```python
import torch

def _softmax(x, axis=-1):
    return torch.softmax(x, dim=axis)
def _gelu(x):
    return torch.nn.functional.gelu(x, approximate="tanh")
def _silu(x):
    return torch.nn.functional.silu(x)
def _sigmoid(x):
    return torch.sigmoid(x)
def _layernorm(x, axis=-1, eps=1e-5):
    m = x.mean(dim=axis, keepdim=True)
    v = x.var(dim=axis, keepdim=True, unbiased=False)
    return (x - m) / torch.sqrt(v + eps)
def _scatter_add(tgt, idx, src, axis=0):
    return tgt.clone().index_add_(axis, idx, src)
def _segment_sum(src, seg, n):
    out = torch.zeros((n,) + src.shape[1:], dtype=src.dtype)
    return out.index_add_(0, seg, src)
def _pad(x, pw):
    flat = tuple(v for pair in reversed(pw) for v in pair)
    return torch.nn.functional.pad(x, flat)

kernel_name = 'gather_scatter__cheap_equivariant_egnn__graph'

def setup_inputs():

    _w = (lambda a: (lambda t: t.to(torch.bfloat16) if t.is_floating_point() else t)(torch.as_tensor(a)))
    N, deg, D, De = 10000, 32, 128, max(4, 1)
    E = N * deg
    return {
        "h": _w((lambda *s: torch.randn(*s, dtype=torch.bfloat16) * 0.1)(N, D)),
        "pos": _w((lambda *s: torch.randn(*s, dtype=torch.bfloat16) * 0.8)(N, 3)),
        "e_attr": _w((lambda *s: torch.randn(*s, dtype=torch.bfloat16) * 0.8)(E, De)),
        "src": _w((lambda lo, hi, *s: torch.randint(lo, hi, s))(0, N, E).to(torch.int64)),
        "dst": _w((lambda lo, hi, *s: torch.randint(lo, hi, s))(0, N, E).to(torch.int64)),
        "w_e": _w(0.1 * (lambda *s: torch.randn(*s, dtype=torch.bfloat16) * 0.8)(2 * D + 1 + De, D)),
        "w_x": _w(0.1 * (lambda *s: torch.randn(*s, dtype=torch.bfloat16) * 0.1)(D, 1)),
        "w_h": _w(0.1 * (lambda *s: torch.randn(*s, dtype=torch.bfloat16) * 0.1)(2 * D, D)),
    }

def reference(h, pos, e_attr, src, dst, w_e, w_x, w_h):
    N, D = h.shape[0], h.shape[1]
    diff = pos[dst] - pos[src]
    dist2 = torch.sum(diff * diff, axis=-1, keepdims=True)
    e_in = torch.concatenate([h[dst], h[src], dist2, e_attr], axis=-1)
    m_ij = _silu(e_in @ w_e)
    coord_scale = m_ij @ w_x
    pos_new = pos + _segment_sum(diff * coord_scale, dst, N)
    m_i = _segment_sum(m_ij, dst, N)
    h_new = h + _silu(torch.concatenate([h, m_i], axis=-1) @ w_h)
    return h_new, pos_new
```

```python
import sys, struct

OUT = sys.argv[1] if len(sys.argv) > 1 else "gather_scatter__cheap_equivariant_egnn__graph.s"

L = []
def e(s=""):
    L.append(s)
def c(s):
    L.append("    ; " + s)
def i(s):
    for ln in s.strip().split("\n"):
        L.append("    " + ln.strip())
def f32(x):
    return "0x%08x" % struct.unpack("<I", struct.pack("<f", x))[0]
def vr(a, n):
    return "v[%d:%d]" % (a, a + n - 1)

N, E = 10000, 320000
NCH, CH = 125, 2560
NLOG2E = -1.4426950408889634
NLN2 = -0.6931471805599453
GMAGIC = 879609344

WS_B, WS_A, WS_RA, WS_RB = 0x1000, 0x280000, 0x500000, 0xA00000
WS_OFF, WS_WH, WS_WS, WS_WX = 0xC00000, 0xC40000, 0xC60000, 0xC61000
WS_USED = 0x1000000

B_POS, B_CNT, B_OFS, B_STA, B_STB, B_END = 0, 61440, 62464, 63488, 104448, 114688
G_W, G_H = 0, 40960
K1_LDS = 114688

CAP = 240
NSLOT = 8 * CAP
M_REC = 0
M_ONE = M_REC + NSLOT * 16
M_ST = M_ONE + NSLOT * 16
M_OFF = M_ST + NSLOT * 40 + 64
M_CNT = M_OFF + NSLOT * 4 + 128
M_NOD = M_CNT + 64
M_H = M_NOD + 192
M_END = M_H + 48 * 272
K2_LDS = M_END
M_MH = 0
M_MP = 48 * 272
assert K2_LDS <= 163840, K2_LDS
assert M_OFF % 16 == 0 and M_CNT % 16 == 0 and M_NOD % 16 == 0 and M_H % 16 == 0

K1 = "egnn_prep_kernel"
K2 = "gather_scatter__cheap_equivariant_egnn__graph_kernel"

hdr = open("gather_scatter__cheap_equivariant_egnn__graph.s.ref").read().split("\n")
for ln in hdr:
    if ln.startswith("; Override") or "@launch" in ln or ln.startswith("; grid="):
        continue
    if not ln.startswith(";"):
        break
    e(ln)
e("; @launch kernel=%s grid=(256,1,1) block=(640,1,1) lds=%d" % (K1, K1_LDS))
e("; @launch kernel=%s grid=(256,1,1) block=(1024,1,1) lds=%d" % (K2, K2_LDS))
e('.amdgcn_target "amdgcn-amd-amdhsa--gfx950"')
e(".text")

e(".globl %s" % K1)
e(".p2align 8")
e(".type %s,@function" % K1)
e("%s:" % K1)
i("""
s_cmp_ge_u32 s2, 256
s_cbranch_scc1 K1_END
s_load_dwordx16 s[16:31], s[0:1], 0
s_load_dwordx2 s[32:33], s[0:1], 80
s_cmp_ge_u32 s2, 251
s_cbranch_scc1 K1_PREP
s_cmp_ge_u32 s2, %d
s_cbranch_scc1 K1_GEMM
""" % NCH)
c("---------------- role: binning ----------------")
i("""
v_lshlrev_b32 v1, 4, v0
v_lshlrev_b32 v2, 5, v0
v_lshlrev_b32 v3, 2, v0
v_mov_b32 v56, 0
v_mov_b32 v57, 1
v_mov_b32 v58, 127
s_mul_i32 s34, s2, 10240
s_lshl_b32 s35, s34, 1
s_movk_i32 s48, 10240
s_movk_i32 s49, 20480
s_movk_i32 s50, 30720
s_mov_b32 s51, 40960
s_mov_b32 s52, 51200
s_mov_b32 s53, %d
s_movk_i32 s54, 625
s_mov_b32 s55, 0xffff0000
ds_write_b32 v3, v56 offset:%d
s_waitcnt lgkmcnt(0)
s_add_u32 s36, s24, s34
s_addc_u32 s37, s25, 0
s_add_u32 s38, s22, s34
s_addc_u32 s39, s23, 0
s_add_u32 s40, s20, s35
s_addc_u32 s41, s21, 0
s_mov_b32 s44, s18
s_mov_b32 s45, s19
s_mov_b32 s46, 60000
s_mov_b32 s47, 0x20000
global_load_dwordx4 v[4:7], v1, s[36:37]
global_load_dwordx4 v[8:11], v1, s[38:39]
buffer_load_dwordx4 v[20:23], v1, s[44:47], 0 offen
buffer_load_dwordx4 v[24:27], v1, s[44:47], s48 offen
buffer_load_dwordx4 v[28:31], v1, s[44:47], s49 offen
buffer_load_dwordx4 v[32:35], v1, s[44:47], s50 offen
buffer_load_dwordx4 v[36:39], v1, s[44:47], s51 offen
buffer_load_dwordx4 v[40:43], v1, s[44:47], s52 offen
global_load_dwordx4 v[12:15], v2, s[40:41]
global_load_dwordx4 v[16:19], v2, s[40:41] offset:16
s_barrier
s_waitcnt vmcnt(9)
""" % (GMAGIC, B_CNT))
for k in range(4):
    i("v_mul_hi_u32 v%d, v%d, s53" % (44 + k, 4 + k))
for k in range(4):
    i("v_lshrrev_b32 v%d, 1, v%d" % (48 + k, 44 + k))
    i("v_and_b32 v%d, 0x3fc, v%d" % (48 + k, 48 + k))
    i("ds_add_rtn_u32 v%d, v%d, v57 offset:%d" % (52 + k, 48 + k, B_CNT))
i("s_waitcnt vmcnt(8)")
for k in range(4):
    i("""
    v_mad_u32_u24 v59, v%d, s54, v58
    v_lshrrev_b32 v59, 7, v59
    v_sub_u32 v59, v%d, v59
    v_and_b32 v%d, 7, v%d
    v_lshl_or_b32 v59, v%d, 3, v59
    v_lshl_or_b32 v%d, v%d, 8, v59
    """ % (44 + k, 4 + k, 44 + k, 44 + k, 44 + k, 60 + k, 8 + k))
for k in range(4):
    i("""
    v_mul_u32_u24 v%d, 6, v%d
    v_mul_u32_u24 v%d, 6, v%d
    v_and_b32 v%d, -4, v%d
    v_and_b32 v%d, -4, v%d
    v_lshlrev_b32 v%d, 4, v%d
    v_lshlrev_b32 v%d, 4, v%d
    """ % (64 + k, 4 + k, 68 + k, 8 + k, 64 + k, 64 + k, 68 + k, 68 + k, 4 + k, 4 + k, 8 + k, 8 + k))
for it in range(6):
    i("s_waitcnt vmcnt(%d)" % (7 - it))
    i("ds_write_b128 v1, %s offset:%d" % (vr(20 + 4 * it, 4), B_POS + it * 10240))
i("""
v_and_b32 v72, 63, v0
v_lshlrev_b32 v72, 4, v72
s_waitcnt lgkmcnt(0)
s_barrier
ds_read_b128 v[20:23], v72 offset:%d
""" % B_CNT)
for k in range(4):
    i("ds_read2_b32 %s, v%d offset0:0 offset1:1" % (vr(24 + 4 * k, 2), 64 + k))
    i("ds_read2_b32 %s, v%d offset0:0 offset1:1" % (vr(26 + 4 * k, 2), 68 + k))
c("scan of 256 counters (every wave, redundantly)")
i("""
s_waitcnt lgkmcnt(8)
v_add_u32 v41, v20, v21
v_add_u32 v42, v41, v22
v_add_u32 v43, v42, v23
v_mov_b32 v40, v43
s_nop 1
v_add_u32_dpp v40, v40, v40 row_shr:1 row_mask:0xf bank_mask:0xf bound_ctrl:0
s_nop 1
v_add_u32_dpp v40, v40, v40 row_shr:2 row_mask:0xf bank_mask:0xf bound_ctrl:0
s_nop 1
v_add_u32_dpp v40, v40, v40 row_shr:4 row_mask:0xf bank_mask:0xf bound_ctrl:0
s_nop 1
v_add_u32_dpp v40, v40, v40 row_shr:8 row_mask:0xf bank_mask:0xf bound_ctrl:0
s_nop 1
v_add_u32_dpp v40, v40, v40 row_bcast:15 row_mask:0xa bank_mask:0xf
s_nop 1
v_add_u32_dpp v40, v40, v40 row_bcast:31 row_mask:0xc bank_mask:0xf
v_sub_u32 v76, v40, v43
v_add_u32 v77, v76, v20
v_add_u32 v78, v76, v41
v_add_u32 v79, v76, v42
ds_write_b128 v72, v[76:79] offset:%d
""" % B_OFS)
for k in range(4):
    i("ds_read_b32 v%d, v%d offset:%d" % (80 + k, 48 + k, B_OFS))
c("wave 0 publishes (start | count<<16) to OFFS[bucket][chunk]")
i("""
v_readfirstlane_b32 s56, v0
s_lshl_b32 s57, s2, 2
s_add_u32 s58, s32, s57
s_addc_u32 s59, s33, 0
s_add_u32 s58, s58, %d
s_addc_u32 s59, s59, 0
s_cmp_lg_u32 s56, 0
s_cbranch_scc1 K1_BIN_NOPUB
v_lshlrev_b32 v73, 7, v72
v_lshl_or_b32 v84, v20, 16, v76
v_lshl_or_b32 v85, v21, 16, v77
v_lshl_or_b32 v86, v22, 16, v78
v_lshl_or_b32 v87, v23, 16, v79
global_store_dword v73, v84, s[58:59]
global_store_dword v73, v85, s[58:59] offset:512
global_store_dword v73, v86, s[58:59] offset:1024
global_store_dword v73, v87, s[58:59] offset:1536
""" % WS_OFF)
e("K1_BIN_NOPUB:")
i("s_waitcnt lgkmcnt(5)")
for k in range(4):
    d0, d1, s0, s1 = 24 + 4 * k, 25 + 4 * k, 26 + 4 * k, 27 + 4 * k
    r0, r1 = 88 + 2 * k, 89 + 2 * k
    i(f"""
    v_alignbit_b32 v{d0}, v{d1}, v{d0}, v{4+k}
    v_lshrrev_b32 v{d1}, v{4+k}, v{d1}
    v_alignbit_b32 v{s0}, v{s1}, v{s0}, v{8+k}
    v_lshrrev_b32 v{s1}, v{8+k}, v{s1}
    v_lshlrev_b32 v40, 16, v{d0}
    v_lshlrev_b32 v41, 16, v{s0}
    v_and_b32 v{d0}, s55, v{d0}
    v_and_b32 v{s0}, s55, v{s0}
    v_lshlrev_b32 v{d1}, 16, v{d1}
    v_lshlrev_b32 v{s1}, 16, v{s1}
    v_sub_f32 v40, v40, v41
    v_sub_f32 v41, v{d0}, v{s0}
    v_sub_f32 v42, v{d1}, v{s1}
    v_cvt_pk_bf16_f32 v{r0}, v40, v41
    v_cvt_pk_bf16_f32 v42, v42, v42
    v_lshlrev_b32 v40, 16, v{r0}
    v_and_b32 v41, s55, v{r0}
    v_and_b32 v42, s55, v42
    v_mul_f32 v40, v40, v40
    v_mul_f32 v41, v41, v41
    v_mul_f32 v43, v42, v42
    v_cvt_pk_bf16_f32 v40, v40, v41
    v_cvt_pk_bf16_f32 v43, v43, v43
    v_lshlrev_b32 v41, 16, v40
    v_and_b32 v40, s55, v40
    v_and_b32 v43, s55, v43
    v_add_f32 v40, v40, v41
    v_add_f32 v40, v40, v43
    v_cvt_pk_bf16_f32 v{r1}, v42, v40
    """)
i("s_waitcnt vmcnt(0) lgkmcnt(0)")
for k in range(4):
    i(f"""
    v_add_u32 v{80+k}, v{80+k}, v{52+k}
    v_lshlrev_b32 v40, 4, v{80+k}
    v_add_u32 v40, {B_STA}, v40
    v_lshlrev_b32 v41, 2, v{80+k}
    v_add_u32 v41, {B_STB}, v41
    ds_write2_b64 v40, {vr(12+2*k,2)}, {vr(88+2*k,2)} offset0:0 offset1:1
    ds_write_b32 v41, v{60+k}
    """)
i(f"""
v_add_u32 v2, {B_STA}, v1
s_mul_i32 s57, s2, 40960
s_add_u32 s60, s32, s57
s_addc_u32 s61, s33, 0
s_add_u32 s60, s60, {WS_RA}
s_addc_u32 s61, s61, 0
s_mov_b32 s62, 40960
s_mov_b32 s63, 0x20000
s_add_u32 s64, s32, s34
s_addc_u32 s65, s33, 0
s_add_u32 s64, s64, {WS_RB}
s_addc_u32 s65, s65, 0
s_waitcnt lgkmcnt(0)
s_barrier
ds_read_b128 v[20:23], v2
ds_read_b128 v[24:27], v2 offset:10240
ds_read_b128 v[28:31], v2 offset:20480
ds_read_b128 v[32:35], v2 offset:30720
ds_read_b128 v[36:39], v2 offset:40960
s_waitcnt lgkmcnt(4)
buffer_store_dwordx4 v[20:23], v1, s[60:63], 0 offen
s_waitcnt lgkmcnt(3)
buffer_store_dwordx4 v[24:27], v1, s[60:63], s48 offen
s_waitcnt lgkmcnt(2)
buffer_store_dwordx4 v[28:31], v1, s[60:63], s49 offen
s_waitcnt lgkmcnt(1)
buffer_store_dwordx4 v[32:35], v1, s[60:63], s50 offen
s_waitcnt lgkmcnt(0)
global_store_dwordx4 v1, v[36:39], s[64:65]
s_endpgm
""")
assert B_STB - B_STA == 40960

c("---------------- role: node GEMM (A' = -log2e * h@W1, B' = -log2e * h@W2) ----------------")
e("K1_GEMM:")
i(f"""
s_sub_u32 s34, s2, {NCH}
s_and_b32 s35, s34, 1
s_lshr_b32 s36, s34, 1
s_mul_i32 s37, s36, 40960
s_lshl_b32 s38, s35, 15
v_lshlrev_b32 v1, 4, v0
v_lshrrev_b32 v2, 4, v0
v_and_b32 v3, 15, v0
v_lshlrev_b32 v3, 4, v3
s_movk_i32 s39, 320
s_movk_i32 s40, 272
v_mad_u32_u24 v4, v2, s39, v3
v_mad_u32_u24 v5, v2, s40, v3
s_movk_i32 s48, 10240
s_movk_i32 s49, 20480
s_movk_i32 s50, 30720
s_waitcnt lgkmcnt(0)
s_add_u32 s44, s26, s38
s_addc_u32 s45, s27, 0
s_mov_b32 s46, 32768
s_mov_b32 s47, 0x20000
s_mov_b32 s52, s16
s_mov_b32 s53, s17
s_mov_b32 s54, 2560000
s_mov_b32 s55, 0x20000
v_add_u32 v6, s37, v1
buffer_load_dwordx4 v[8:11], v1, s[44:47], 0 offen
buffer_load_dwordx4 v[12:15], v1, s[44:47], s48 offen
buffer_load_dwordx4 v[16:19], v1, s[44:47], s49 offen
buffer_load_dwordx4 v[20:23], v1, s[44:47], s50 offen
buffer_load_dwordx4 v[24:27], v6, s[52:55], 0 offen
buffer_load_dwordx4 v[28:31], v6, s[52:55], s48 offen
buffer_load_dwordx4 v[32:35], v6, s[52:55], s49 offen
buffer_load_dwordx4 v[36:39], v6, s[52:55], s50 offen
v_lshrrev_b32 v7, 6, v0
v_and_b32 v40, 63, v0
v_cmp_gt_u32 vcc, 128, v0
v_readfirstlane_b32 s41, v7
s_and_b32 s42, s41, 1
s_lshr_b32 s43, s41, 1
""")
i(f"""
s_waitcnt vmcnt(7)
ds_write_b128 v4, v[8:11] offset:{G_W}
s_waitcnt vmcnt(6)
ds_write_b128 v4, v[12:15] offset:{G_W+12800}
s_waitcnt vmcnt(5)
ds_write_b128 v4, v[16:19] offset:{G_W+25600}
s_waitcnt vmcnt(4)
s_and_saveexec_b64 s[56:57], vcc
ds_write_b128 v4, v[20:23] offset:{G_W+38400}
s_mov_b64 exec, s[56:57]
v_add_u32 v5, {G_H}, v5
s_waitcnt vmcnt(3)
ds_write_b128 v5, v[24:27]
s_waitcnt vmcnt(2)
ds_write_b128 v5, v[28:31] offset:{40*272}
s_waitcnt vmcnt(1)
ds_write_b128 v5, v[32:35] offset:{80*272}
s_waitcnt vmcnt(0)
ds_write_b128 v5, v[36:39] offset:{120*272}
""")
i(f"""
v_lshrrev_b32 v41, 5, v40
v_bfe_u32 v42, v40, 2, 2
v_lshl_add_u32 v42, v41, 3, v42
v_mul_u32_u24 v42, 320, v42
v_bfe_u32 v43, v40, 4, 1
v_lshlrev_b32 v43, 5, v43
v_and_b32 v44, 3, v40
v_lshl_add_u32 v43, v44, 3, v43
v_add_u32 v42, v42, v43
s_lshl_b32 s58, s42, 7
v_add_u32 v42, s58, v42
v_and_b32 v44, 31, v40
s_lshl_b32 s59, s43, 5
v_add_u32 v45, s59, v44
v_mul_u32_u24 v45, 272, v45
v_lshl_add_u32 v45, v41, 4, v45
v_add_u32 v45, {G_H}, v45
""")
for r in range(32):
    i("v_mov_b32 v%d, 0" % (64 + r))
i("""
s_waitcnt lgkmcnt(0)
s_barrier
""")
def gemm_reads(s):
    i("ds_read_b128 %s, v45 offset:%d" % (vr(8 + 4 * s, 4), s * 32))
    for t in range(2):
        for b in range(2):
            i("ds_read_b64_tr_b16 %s, v42 offset:%d" % (vr(96 + 32 * t + 4 * s + 2 * b, 2), G_W + (16 * s + 4 * b) * 320 + t * 64))
for s in range(3):
    gemm_reads(s)
for s in range(8):
    rem = min(2, 7 - s)
    i("s_waitcnt lgkmcnt(%d)" % (5 * rem))
    i("v_mfma_f32_32x32x16_bf16 v[64:79], %s, %s, v[64:79]" % (vr(8 + 4 * s, 4), vr(96 + 4 * s, 4)))
    i("v_mfma_f32_32x32x16_bf16 v[80:95], %s, %s, v[80:95]" % (vr(8 + 4 * s, 4), vr(128 + 4 * s, 4)))
    if s + 3 < 8:
        gemm_reads(s + 3)
i(f"""
s_mul_i32 s60, s36, 160
s_add_u32 s60, s60, s59
s_lshl_b32 s60, s60, 8
s_add_u32 s60, s60, s58
v_lshlrev_b32 v46, 10, v41
v_lshl_add_u32 v46, v44, 2, v46
v_add_u32 v46, s60, v46
s_mov_b32 s61, {WS_A}
s_cmp_eq_u32 s35, 1
s_cselect_b32 s61, {WS_B}, s61
s_add_u32 s64, s32, s61
s_addc_u32 s65, s33, 0
s_mov_b32 s66, 2560000
s_mov_b32 s67, 0x20000
s_movk_i32 s62, 4096
s_mov_b32 s68, {f32(NLOG2E)}
s_mov_b32 s69, {f32(NLOG2E)}
s_mov_b32 s70, 0xffff0000
s_mov_b32 s71, 0x80000000
s_nop 4
""")
for r in range(0, 32, 2):
    i("v_pk_mul_f32 %s, %s, s[68:69]" % (vr(64 + r, 2), vr(64 + r, 2)))
def gstore(reg, r):
    row = 8 * (r >> 2) + (r & 3)
    if row < 16:
        i("buffer_store_dword v%d, v46, s[64:67], 0 offen offset:%d" % (reg, row * 256))
    else:
        i("buffer_store_dword v%d, v46, s[64:67], s62 offen offset:%d" % (reg, (row - 16) * 256))
i("s_cmp_eq_u32 s35, 1")
i("s_cbranch_scc1 K1_GEMM_B")
for r in range(16):
    i("v_cvt_pk_bf16_f32 v%d, v%d, v%d" % (8 + r, 64 + r, 80 + r))
    gstore(8 + r, r)
i("s_endpgm")
e("K1_GEMM_B:")
c("low half = bf16(x0); high half chosen so that the whole dword read as f32 is nearest to x1")
for r in range(16):
    i(f"""
    v_cvt_pk_bf16_f32 v{8+r}, v{64+r}, 0
    v_and_b32 v47, 0x7fffffff, v{80+r}
    v_add_u32 v47, 0x8000, v47
    v_sub_u32 v47, v47, v{8+r} clamp
    v_and_or_b32 v47, v47, s70, v{8+r}
    v_bfi_b32 v{8+r}, s71, v{80+r}, v47
    """)
    gstore(8 + r, r)
i("s_endpgm")

c("---------------- role: weight fragment prep ----------------")
e("K1_PREP:")
i(f"""
v_lshrrev_b32 v7, 6, v0
v_and_b32 v40, 63, v0
s_sub_u32 s34, s2, 251
v_readfirstlane_b32 s41, v7
s_cmp_eq_u32 s34, 4
s_cbranch_scc1 K1_SMALL
s_lshl_b32 s35, s34, 4
s_add_u32 s35, s35, s41
s_add_u32 s36, s35, 10
s_lshl_b32 s37, s34, 4
s_add_u32 s37, s37, 16
v_and_b32 v41, 15, v40
v_lshrrev_b32 v42, 4, v40
v_lshlrev_b32 v43, 4, v40
s_waitcnt lgkmcnt(0)
s_mov_b32 s44, s30
s_mov_b32 s45, s31
s_mov_b32 s46, 65536
s_mov_b32 s47, 0x20000
s_add_u32 s52, s32, {WS_WH}
s_addc_u32 s53, s33, 0
s_mov_b32 s54, 65536
s_mov_b32 s55, 0x20000
""")
e("K1_PREP_LOOP:")
i("""
s_lshr_b32 s38, s35, 3
s_and_b32 s39, s35, 7
s_lshl_b32 s40, s38, 5
v_lshl_add_u32 v44, v41, 1, s40
s_cmp_ge_u32 s39, 4
s_cbranch_scc1 K1_PREP_M
s_lshl_b32 s48, s39, 13
v_lshl_add_u32 v44, v42, 11, v44
""")
for j in range(8):
    i("buffer_load_ushort v%d, v44, s[44:47], s48 offen offset:%d" % (16 + j, j * 256))
i("s_branch K1_PREP_ST")
e("K1_PREP_M:")
i("""
s_sub_u32 s39, s39, 4
s_lshr_b32 s48, s39, 1
s_lshl_b32 s48, s48, 6
s_and_b32 s49, s39, 1
s_lshl_b32 s49, s49, 4
s_add_u32 s48, s48, s49
s_add_u32 s48, s48, 128
s_lshl_b32 s48, s48, 8
s_add_u32 s49, s48, 8192
v_lshl_add_u32 v44, v42, 10, v44
""")
for j in range(8):
    i("buffer_load_ushort v%d, v44, s[44:47], s%d offen offset:%d" % (16 + j, 49 if j & 1 else 48, (j >> 1) * 256))
e("K1_PREP_ST:")
i("""
s_lshl_b32 s50, s35, 10
s_waitcnt vmcnt(0)
v_lshl_or_b32 v8, v17, 16, v16
v_lshl_or_b32 v9, v19, 16, v18
v_lshl_or_b32 v10, v21, 16, v20
v_lshl_or_b32 v11, v23, 16, v22
buffer_store_dwordx4 v[8:11], v43, s[52:55], s50 offen
s_add_u32 s35, s35, 10
s_cmp_lt_u32 s35, s37
s_nop 1
s_cbranch_scc1 K1_PREP_LOOP
s_endpgm
""")
e("K1_SMALL:")
c("threads 0..127: WSM[f] = -log2e*{Wa0..3,0,0,0,w_d}[f]; WXP[p] = wx[phi(p)]")
i(f"""
s_cmp_ge_u32 s41, 2
s_cbranch_scc1 K1_END
v_lshlrev_b32 v1, 1, v0
v_lshlrev_b32 v2, 4, v0
v_and_b32 v3, 64, v0
v_and_b32 v4, 1, v0
v_lshl_or_b32 v3, v4, 5, v3
v_bfe_u32 v4, v0, 1, 5
v_add_lshl_u32 v3, v3, v4, 1
s_waitcnt lgkmcnt(0)
s_add_u32 s44, s26, 65536
s_addc_u32 s45, s27, 0
s_add_u32 s52, s32, {WS_WS}
s_addc_u32 s53, s33, 0
s_add_u32 s54, s32, {WS_WX}
s_addc_u32 s55, s33, 0
s_mov_b32 s68, {f32(NLOG2E)}
global_load_ushort v8, v1, s[44:45]
global_load_ushort v9, v1, s[44:45] offset:256
global_load_ushort v10, v1, s[44:45] offset:512
global_load_ushort v11, v1, s[44:45] offset:768
global_load_ushort v12, v1, s[44:45] offset:1024
global_load_ushort v13, v3, s[28:29]
s_waitcnt vmcnt(0)
""")
for k in range(5):
    i("v_lshlrev_b32 v%d, 16, v%d" % (8 + k, 8 + k))
    i("v_mul_f32 v%d, s68, v%d" % (8 + k, 8 + k))
i("""
v_cvt_pk_bf16_f32 v16, v9, v10
v_cvt_pk_bf16_f32 v17, v11, v12
v_mov_b32 v18, 0
v_cvt_pk_bf16_f32 v19, 0, v8
global_store_dwordx4 v2, v[16:19], s[52:53]
global_store_short v1, v13, s[54:55]
""")
e("K1_END:")
i("s_endpgm")

G0, G1, D0, D1, LL, T, P, P2, X, S0, S1, W0, W1 = 16, 32, 48, 64, 80, 96, 104, 108, 112, 116, 120, 124, 12
O = 96
e(".globl %s" % K2)
e(".p2align 8")
e(".type %s,@function" % K2)
e("%s:" % K2)
i(f"""
s_cmp_ge_u32 s2, 256
s_cbranch_scc1 K2_END
s_load_dwordx4 s[16:19], s[0:1], 0
s_load_dwordx2 s[20:21], s[0:1], 64
s_load_dwordx2 s[22:23], s[0:1], 80
v_lshrrev_b32 v1, 6, v0
v_lshrrev_b32 v2, 4, v0
v_readfirstlane_b32 s3, v1
s_lshr_b32 s4, s3, 1
s_and_b32 s5, s3, 1
s_mov_b32 s6, 0
s_mov_b32 s7, 32
s_lshl_b32 s8, s2, 9
s_add_u32 s8, s8, {WS_OFF}
v_lshlrev_b32 v3, 2, v2
s_waitcnt lgkmcnt(0)
s_mov_b32 s24, s22
s_mov_b32 s25, s23
s_mov_b32 s26, {WS_USED}
s_mov_b32 s27, 0x20000
buffer_load_dword v4, v3, s[24:27], s8 offen
buffer_load_dword v5, v3, s[24:27], s8 offen offset:256
""")
c("gather SRD (add_tid, stride 4): base = ws + WS_B - 128 + H*128")
i(f"""
s_lshl_b32 s9, s5, 7
s_add_u32 s9, s9, {WS_B - 128}
s_add_u32 s28, s22, s9
s_addc_u32 s29, s23, 0
s_and_b32 s29, s29, 0xffff
s_or_b32 s29, s29, 0x40000
s_mov_b32 s30, 0x1000000
s_mov_b32 s31, 0x00800000
s_mov_b32 s32, s16
s_mov_b32 s33, s17
s_mov_b32 s34, 2560000
s_mov_b32 s35, 0x20000
s_mov_b32 s36, s20
s_mov_b32 s37, s21
s_mov_b32 s38, 2620000
s_mov_b32 s39, 0x20000
s_movk_i32 s10, 625
s_lshl_b32 s11, s2, 3
""")
c("h tile (row m = t>>4 <48): node(m) = n0(8b + m/5) + m%5 ; NODEOFF table")
i(f"""
v_mul_u32_u24 v6, 52, v2
v_lshrrev_b32 v6, 8, v6
v_mul_u32_u24 v7, 5, v6
v_sub_u32 v7, v2, v7
v_add_u32 v6, s11, v6
v_mul_u32_u24 v8, s10, v6
v_add_u32 v9, 752, v8
v_add_u32 v8, 127, v8
v_lshrrev_b32 v9, 7, v9
v_lshrrev_b32 v8, 7, v8
v_add_u32 v8, v8, v7
v_cmp_lt_u32 vcc, v8, v9
v_cmp_gt_u32 s[12:13], 40, v2
v_lshlrev_b32 v8, 8, v8
v_bfrev_b32 v9, 1
s_and_b64 vcc, vcc, s[12:13]
v_and_b32 v10, 15, v0
v_cndmask_b32 v8, v9, v8, vcc
v_lshl_add_u32 v11, v10, 4, v8
buffer_load_dwordx4 {vr(LL,4)}, v11, s[32:35], 0 offen
v_cmp_gt_u32 vcc, 768, v0
s_movk_i32 s12, 272
v_lshlrev_b32 v10, 4, v10
v_mad_u32_u24 v11, v2, s12, v10
v_add_u32 v3, {M_NOD}, v3
s_and_saveexec_b64 s[14:15], vcc
ds_write_b32 v3, v8
s_mov_b64 exec, s[14:15]
""")
c("W fragments: lanes<32 WSM rows, lanes>=32 A' rows of the group's nodes")
i(f"""
v_and_b32 v6, 63, v0
v_and_b32 v7, 31, v0
s_add_u32 s12, s11, s4
s_mul_i32 s12, s12, 625
s_add_u32 s12, s12, 127
s_lshr_b32 s12, s12, 7
s_lshl_b32 s13, s5, 7
v_lshlrev_b32 v9, 2, v7
v_add_u32 v9, s13, v9
s_lshl_b32 s13, s5, 10
s_add_u32 s13, s13, {WS_WS}
v_lshlrev_b32 v10, 4, v7
buffer_load_dwordx4 {vr(W0,4)}, v10, s[24:27], s13 offen
buffer_load_dwordx4 {vr(W1,4)}, v10, s[24:27], s13 offen offset:512
""")
for k in range(5):
    i(f"""
    s_add_u32 s13, s12, {k}
    s_min_u32 s13, s13, 9999
    s_lshl_b32 s13, s13, 8
    s_add_u32 s13, s13, {WS_A}
    buffer_load_dword v{LL+4+k}, v9, s[24:27], s13 offen
    """)
c("main loop LDS addresses")
for r in range(32):
    i("v_mov_b32 v%d, 0" % (G0 + r))
e("K2_ROUND:")
c("zero fill REC/ONE/ST, OFF=128, counters=0")
i(f"""
v_lshlrev_b32 v6, 4, v0
v_mov_b32 v{T}, 0
v_mov_b32 v{T+1}, 0
v_mov_b32 v{T+2}, 0
v_mov_b32 v{T+3}, 0
v_mov_b32 v{T+4}, 128
v_mov_b32 v{T+5}, 128
v_mov_b32 v{T+6}, 128
v_mov_b32 v{T+7}, 128
v_add_u32 v7, 65536, v6
v_add_u32 v8, 131072, v6
""")
nz = M_OFF // 16384
remz = M_OFF - nz * 16384
for k in range(nz):
    base = "v6" if k < 4 else ("v7" if k < 8 else "v8")
    i("ds_write_b128 %s, %s offset:%d" % (base, vr(T, 4), (k % 4) * 16384))
assert nz == 8
noff = (M_CNT - M_OFF) // 16
i(f"""
v_cmp_gt_u32 vcc, {remz//16}, v0
s_and_saveexec_b64 s[14:15], vcc
ds_write_b128 v8, {vr(T,4)}
s_mov_b64 exec, s[14:15]
v_cmp_gt_u32 vcc, {noff}, v0
s_and_saveexec_b64 s[14:15], vcc
ds_write_b128 v8, {vr(T+4,4)} offset:{M_OFF-131072}
s_mov_b64 exec, s[14:15]
v_cmp_gt_u32 vcc, 4, v0
s_and_saveexec_b64 s[14:15], vcc
ds_write_b128 v8, {vr(T,4)} offset:{M_CNT-131072}
s_mov_b64 exec, s[14:15]
""")
c("record indices. v4/v5 = start|cnt<<16 of chunks slot, slot+64")
i(f"""
v_lshrrev_b32 v2, 4, v0
v_and_b32 v9, 15, v0
v_cmp_gt_u32 vcc, {NCH-64}, v2
v_mul_u32_u24 v10, {CH}, v2
v_add_u32 v9, s6, v9
s_add_u32 s13, s6, s7
s_cmp_eq_u32 s6, 0
s_cbranch_scc0 K2_R_W0
s_waitcnt vmcnt(8)
s_branch K2_R_W1
""")
e("K2_R_W0:")
i("s_waitcnt vmcnt(0)")
e("K2_R_W1:")
i(f"""
v_cndmask_b32 v5, 0, v5, vcc
v_lshrrev_b32 v6, 16, v4
v_lshrrev_b32 v7, 16, v5
v_and_b32 v4, 0xffff, v4
v_and_b32 v5, 0xffff, v5
v_max_u32 v8, v6, v7
v_cmp_lt_u32 s[48:49], s13, v8
v_min_u32 v6, s13, v6
v_min_u32 v7, s13, v7
v_add3_u32 v4, v4, v10, v9
v_add3_u32 v5, v5, v10, v9
v_add_u32 v5, {64*CH}, v5
v_bfrev_b32 v8, 1
v_add_u32 v10, 16, v9
v_cmp_lt_u32 s[40:41], v9, v6
v_cmp_lt_u32 s[44:45], v9, v7
v_cmp_lt_u32 s[42:43], v10, v6
v_cmp_lt_u32 s[46:47], v10, v7
s_mov_b32 s50, {WS_RA}
s_mov_b32 s51, {WS_RB}
v_lshlrev_b32 v6, 4, v4
v_lshlrev_b32 v7, 4, v5
v_lshlrev_b32 v4, 2, v4
v_lshlrev_b32 v5, 2, v5
v_cndmask_b32 v9, v8, v6, s[40:41]
v_cndmask_b32 v10, v8, v4, s[40:41]
buffer_load_dwordx4 {vr(D0,4)}, v9, s[24:27], s50 offen
buffer_load_dword v{D1}, v10, s[24:27], s51 offen
v_cndmask_b32 v9, v8, v7, s[44:45]
v_cndmask_b32 v10, v8, v5, s[44:45]
buffer_load_dwordx4 {vr(D0+8,4)}, v9, s[24:27], s50 offen
buffer_load_dword v{D1+2}, v10, s[24:27], s51 offen
v_cndmask_b32 v9, v8, v6, s[42:43]
v_cndmask_b32 v10, v8, v4, s[42:43]
buffer_load_dwordx4 {vr(D0+4,4)}, v9, s[24:27], s50 offen offset:256
buffer_load_dword v{D1+1}, v10, s[24:27], s51 offen offset:64
v_cndmask_b32 v9, v8, v7, s[46:47]
v_cndmask_b32 v10, v8, v5, s[46:47]
buffer_load_dwordx4 {vr(D0+12,4)}, v9, s[24:27], s50 offen offset:256
buffer_load_dword v{D1+3}, v10, s[24:27], s51 offen offset:64
s_cmp_eq_u32 s6, 0
s_cbranch_scc0 K2_R_NOFIRST
s_cmp_eq_u32 s7, 32
s_cbranch_scc0 K2_R_NOFIRST
""")
c("first round only: h tile -> LDS, finish W fragments")
i(f"""
s_waitcnt vmcnt(8)
v_cmp_gt_u32 vcc, 768, v0
v_add_u32 v11, {M_H}, v11
s_and_saveexec_b64 s[14:15], vcc
ds_write_b128 v11, {vr(LL,4)}
s_mov_b32 exec_lo, 0
s_mov_b32 exec_hi, -1
s_mov_b32 s12, 0x05040100
s_mov_b32 s13, 0x07060302
v_perm_b32 v{W0}, v{LL+5}, v{LL+4}, s12
v_perm_b32 v{W0+1}, v{LL+7}, v{LL+6}, s12
v_and_b32 v{W0+2}, 0xffff, v{LL+8}
v_mov_b32 v{W0+3}, 0
v_perm_b32 v{W1}, v{LL+5}, v{LL+4}, s13
v_perm_b32 v{W1+1}, v{LL+7}, v{LL+6}, s13
v_lshrrev_b32 v{W1+2}, 16, v{LL+8}
v_mov_b32 v{W1+3}, 0
s_mov_b64 exec, -1
""")
e("K2_R_NOFIRST:")
i(f"""
v_mov_b32 v11, 1
v_mov_b32 v10, {M_CNT}
s_waitcnt lgkmcnt(0)
s_barrier
s_mov_b64 exec, s[48:49]
ds_write_b32 v10, v11 offset:32
s_mov_b64 exec, -1
s_movk_i32 s12, {CAP}
s_mov_b32 s13, 0x3f800000
s_mov_b32 s52, 0xffff
v_mov_b32 v{T+4}, 0x3f80
v_mov_b32 v{T+5}, 1.0
s_waitcnt vmcnt(0)
""")
for q in range(4):
    i(f"""
    s_mov_b64 exec, s[{40+2*q}:{41+2*q}]
    v_bfe_u32 v{LL+q}, v{D1+q}, 3, 3
    v_lshl_add_u32 v4, v{LL+q}, 2, v10
    ds_add_rtn_u32 v{LL+4+q}, v4, v11
    """)
for q in range(4):
    A = D0 + 4 * q
    i(f"""
    s_mov_b64 exec, s[{40+2*q}:{41+2*q}]
    s_waitcnt lgkmcnt({3-q if q else 3})
    """ if q == 0 else f"""
    s_mov_b64 exec, s[{40+2*q}:{41+2*q}]
    """)
    if q == 0:
        i("s_waitcnt lgkmcnt(0)")
    i(f"""
    v_cmp_gt_u32 vcc, s12, v{LL+4+q}
    v_mad_u32_u24 v4, v{LL+q}, s12, v{LL+4+q}
    v_and_b32 v5, 7, v{D1+q}
    s_and_b64 exec, exec, vcc
    v_lshlrev_b32 v6, 4, v4
    ds_write_b128 v6, {vr(A,4)} offset:{M_REC}
    v_lshl_add_u32 v6, v5, 1, v6
    ds_write_b16 v6, v{T+4} offset:{M_ONE}
    v_mul_u32_u24 v7, 40, v4
    v_lshl_add_u32 v7, v5, 3, v7
    v_add_u32 v7, {M_ST}, v7
    v_bfi_b32 v{A+3}, s52, v{A+3}, v{T+5}
    ds_write_b64 v7, {vr(A+2,2)}
    v_not_b32 v8, v{LL+4+q}
    v_and_b32 v8, 4, v8
    v_and_b32 v9, 0xffffff00, v{D1+q}
    v_lshl_or_b32 v9, v8, 5, v9
    v_lshlrev_b32 v4, 2, v4
    v_add_u32 v4, {M_OFF}, v4
    ds_write_b32 v4, v9
    """)
i(f"""
s_mov_b64 exec, -1
s_waitcnt lgkmcnt(0)
s_barrier
ds_read_b128 v[4:7], v10
ds_read_b128 {vr(LL,4)}, v10 offset:16
ds_read_b32 v8, v10 offset:32
v_lshl_add_u32 v9, s4, 2, v10
ds_read_b32 v9, v9
""")
c("lane addresses for the main loop")
i(f"""
v_and_b32 v{T}, 63, v0
v_lshrrev_b32 v{T+1}, 5, v{T}
v_and_b32 v{T+2}, 31, v{T}
s_mul_i32 s13, s4, {CAP}
s_lshl_b32 s14, s13, 2
s_add_u32 s14, s14, {M_OFF}
v_lshlrev_b32 v1, 4, v{T+1}
v_add_u32 v1, s14, v1
s_lshl_b32 s14, s13, 4
s_movk_i32 s15, {M_ONE}
v_mul_u32_u24 v2, s15, v{T+1}
v_lshl_add_u32 v2, v{T+2}, 4, v2
v_add_u32 v2, s14, v2
s_mul_i32 s14, s13, 40
s_add_u32 s14, s14, {M_ST}
v_bfe_u32 v3, v{T}, 2, 2
v_lshl_add_u32 v3, v{T+1}, 2, v3
v_mul_u32_u24 v3, 40, v3
v_bfe_u32 v{T+3}, v{T}, 4, 1
v_lshl_add_u32 v3, v{T+3}, 5, v3
v_and_b32 v{T+3}, 3, v{T}
v_lshl_add_u32 v3, v{T+3}, 3, v3
v_add_u32 v3, s14, v3
s_waitcnt lgkmcnt(0)
v_max3_u32 v4, v4, v5, v6
v_max3_u32 v4, v4, v7, v{LL}
v_max3_u32 v4, v4, v{LL+1}, v{LL+2}
v_max_u32 v4, v4, v{LL+3}
s_nop 0
v_readfirstlane_b32 s13, v4
v_readfirstlane_b32 s53, v8
v_readfirstlane_b32 s54, v9
s_cmp_gt_u32 s13, {CAP}
s_cbranch_scc1 K2_OVERFLOW
s_add_u32 s54, s54, 15
s_lshr_b32 s54, s54, 4
s_cmp_eq_u32 s54, 0
s_cbranch_scc1 K2_LOOP_DONE
""")
def issue_off_reads():
    for g in range(4):
        i("ds_read_b128 %s, v1 offset:%d" % (vr(O + 4 * g, 4), g * 32))
def issue_gathers():
    for r in range(16):
        i("buffer_load_dword v%d, v%d, s[28:31], 0 offen" % (LL + r, O + r))
issue_off_reads()
i("s_waitcnt lgkmcnt(0)")
issue_gathers()
i("v_add_u32 v1, 128, v1")

def silu_batch(D, b, Pd, mf_exp=None, mf_rcp=None):
    base = D + 8 * b
    for k in range(8):
        i("v_exp_f32 v%d, v%d" % (T + k, base + k))
        if k == 1 and mf_exp:
            i(mf_exp)
    for k in range(0, 8, 2):
        i("v_pk_add_f32 %s, %s, 1.0 op_sel_hi:[1,0]" % (vr(T + k, 2), vr(T + k, 2)))
    for k in range(8):
        i("v_rcp_f32 v%d, v%d" % (T + k, T + k))
        if k == 1 and mf_rcp:
            i(mf_rcp)
    for k in range(0, 8, 2):
        i("v_pk_mul_f32 %s, %s, %s" % (vr(T + k, 2), vr(T + k, 2), vr(base + k, 2)))
    for k in range(4):
        i("v_cvt_pk_bf16_f32 v%d, v%d, v%d" % (Pd + k, T + 2 * k, T + 2 * k + 1))
def mf(d, a, b, cc):
    return "v_mfma_f32_32x32x16_bf16 %s, %s, %s, %s" % (vr(d, 16), vr(a, 4), vr(b, 4), vr(cc, 16))

def tile_head(full):
    i("ds_read_b128 %s, v2" % vr(X, 4))
    i("ds_read_b64_tr_b16 %s, v3" % vr(S0, 2))
    i("ds_read_b64_tr_b16 %s, v3 offset:320" % vr(S0 + 2, 2))
    if full:
        i("ds_read_b64_tr_b16 %s, v3 offset:640" % vr(S1, 2))
        i("ds_read_b64_tr_b16 %s, v3 offset:960" % vr(S1 + 2, 2))

e("K2_LOOP:")
i("""
s_cmp_eq_u32 s54, 1
s_cbranch_scc1 K2_HALF
""")
tile_head(True)
issue_off_reads()
i("s_waitcnt vmcnt(0) lgkmcnt(8)")
i(mf(D1, X, W1, LL))
for r in range(16):
    i("v_lshlrev_b32 v%d, 16, v%d" % (D0 + r, LL + r))
i("""
s_sub_u32 s54, s54, 2
v_add_u32 v2, 512, v2
v_add_u32 v3, 1280, v3
""")
i(mf(D0, X, W0, D0))
i("""
s_cmp_eq_u32 s54, 0
s_cbranch_scc1 K2_NOPF
s_waitcnt lgkmcnt(0)
""")
issue_gathers()
i("v_add_u32 v1, 128, v1")
e("K2_NOPF:")
i("s_waitcnt lgkmcnt(0)")
silu_batch(D1, 0, P)
silu_batch(D1, 1, P2, mf_exp=mf(G1, S0, P, G1))
silu_batch(D0, 0, P, mf_exp=mf(G1, S1, P2, G1))
silu_batch(D0, 1, P2, mf_exp=mf(G0, S0, P, G0))
i("""
s_cmp_eq_u32 s54, 0
s_nop 0
""")
i(mf(G0, S1, P2, G0))
i("""
s_cbranch_scc0 K2_LOOP
s_branch K2_LOOP_DONE
""")
e("K2_HALF:")
tile_head(False)
i("s_waitcnt vmcnt(0) lgkmcnt(2)")
i(mf(D1, X, W1, LL))
for r in range(16):
    i("v_lshlrev_b32 v%d, 16, v%d" % (D0 + r, LL + r))
i("s_nop 1")
i(mf(D0, X, W0, D0))
i("s_waitcnt lgkmcnt(0)")
silu_batch(D1, 0, P)
silu_batch(D0, 0, P2, mf_exp=mf(G1, S0, P, G1))
i("s_nop 1")
i(mf(G0, S0, P2, G0))
e("K2_LOOP_DONE:")
i("""
s_cmp_eq_u32 s53, 0
s_cbranch_scc1 K2_EPI
s_add_u32 s6, s6, s7
s_branch K2_NEXT
""")
e("K2_OVERFLOW:")
i("s_lshr_b32 s7, s7, 1")
e("K2_NEXT:")
i("""
v_lshrrev_b32 v3, 4, v0
v_lshlrev_b32 v3, 2, v3
buffer_load_dword v4, v3, s[24:27], s8 offen
buffer_load_dword v5, v3, s[24:27], s8 offen offset:256
s_waitcnt vmcnt(0) lgkmcnt(0)
s_barrier
s_branch K2_ROUND
""")

e("K2_EPI:")
c("weights for the epilogue; waves 0-7: node GEMM column tile, waves 8-15: pos rows")
WF = 48
i(f"""
v_and_b32 v4, 63, v0
v_and_b32 v5, 15, v4
v_lshrrev_b32 v6, 4, v4
v_lshlrev_b32 v7, 4, v4
s_movk_i32 s12, 272
v_mul_u32_u24 v8, s12, v5
v_lshl_add_u32 v8, v6, 4, v8
s_cmp_ge_u32 s3, 8
s_cbranch_scc1 K2_EPI_P0
s_lshl_b32 s13, s3, 13
s_add_u32 s13, s13, {WS_WH}
s_add_u32 s14, s13, 4096
""")
for s in range(8):
    i("buffer_load_dwordx4 %s, v7, s[24:27], s%d offen offset:%d" % (vr(WF + 4 * s, 4), 13 if s < 4 else 14, (s & 3) * 1024))
AF = 80
ACH, ACM = 96, 108
i(f"v_add_u32 v9, {M_H}, v8")
for r in range(24):
    i("v_mov_b32 v%d, 0" % (ACH + r))
def mf16(d, a, b):
    return "v_mfma_f32_16x16x32_bf16 %s, %s, %s, %s" % (vr(d, 4), vr(a, 4), vr(b, 4), vr(d, 4))
for mt in range(3):
    for s in range(4):
        i("ds_read_b128 %s, v9 offset:%d" % (vr(AF + 4 * s, 4), mt * 16 * 272 + s * 64))
    if mt == 0:
        i("s_waitcnt vmcnt(4)")
    for s in range(4):
        i("s_waitcnt lgkmcnt(%d)" % (3 - s))
        i(mf16(ACH + 4 * mt, AF + 4 * s, WF + 4 * s))
i("s_branch K2_EPI_B")
e("K2_EPI_P0:")
i(f"""
s_mov_b32 s13, {WS_WX}
v_lshlrev_b32 v9, 4, v6
buffer_load_dwordx4 {vr(WF,4)}, v9, s[24:27], s13 offen
buffer_load_dwordx4 {vr(WF+4,4)}, v9, s[24:27], s13 offen offset:64
buffer_load_dwordx4 {vr(WF+8,4)}, v9, s[24:27], s13 offen offset:128
buffer_load_dwordx4 {vr(WF+12,4)}, v9, s[24:27], s13 offen offset:192
s_sub_u32 s14, s3, 8
s_lshl_b32 s14, s14, 4
v_and_b32 v10, 3, v5
v_lshl_add_u32 v10, v6, 2, v10
v_add_u32 v10, s14, v10
v_mul_u32_u24 v11, 171, v10
v_lshrrev_b32 v11, 9, v11
v_mul_u32_u24 v{AF}, 3, v11
v_sub_u32 v10, v10, v{AF}
v_lshlrev_b32 v11, 2, v11
v_add_u32 v11, {M_NOD}, v11
ds_read_b32 v11, v11
v_cmp_gt_u32 vcc, 4, v5
v_bfrev_b32 v{AF+1}, 1
s_mov_b32 s40, s18
s_mov_b32 s41, s19
s_mov_b32 s42, 60000
s_mov_b32 s43, 0x20000
v_mov_b32 v{ACH}, 0
v_mov_b32 v{ACH+1}, 0
v_mov_b32 v{ACH+2}, 0
v_mov_b32 v{ACH+3}, 0
s_waitcnt lgkmcnt(0)
v_cmp_le_i32 s[14:15], 0, v11
v_lshrrev_b32 v11, 8, v11
v_mul_u32_u24 v11, 6, v11
v_lshl_add_u32 v11, v10, 1, v11
s_and_b64 vcc, vcc, s[14:15]
s_nop 1
v_cndmask_b32 v11, v{AF+1}, v11, vcc
buffer_load_ushort v10, v11, s[40:43], 0 offen
""")
e("K2_EPI_B:")
c("all waves: publish G (bf16) after every wave has left the main loop")
i(f"""
v_lshrrev_b32 v{T+24}, 5, v4
v_and_b32 v{T+25}, 31, v4
s_mul_i32 s13, s4, 5
v_add_u32 v{T+24}, s13, v{T+24}
s_lshl_b32 s13, s5, 7
v_lshl_add_u32 v{T+25}, v{T+25}, 2, s13
v_mad_u32_u24 v{T+26}, v{T+24}, s12, v{T+25}
s_movk_i32 s13, 816
v_mad_u32_u24 v{T+27}, v{T+24}, s13, v{T+25}
""")
for r in range(12):
    i("v_cvt_pk_bf16_f32 v%d, v%d, v%d" % (G0 + r, G0 + r, G1 + r))
i("s_barrier")
for gq in range(3):
    if gq == 2:
        i("s_mov_b32 exec_hi, 0")
    for k in range(3):
        i("ds_write_b32 v%d, v%d offset:%d" % (T + 27, G0 + 4 * gq + k, M_MP + 2 * gq * 816 + k * 272))
    i("ds_write_b32 v%d, v%d offset:%d" % (T + 26, G0 + 4 * gq + 3, M_MH + 2 * gq * 272))
i(f"""
s_mov_b64 exec, -1
s_mov_b32 s44, {f32(NLN2)}
s_mov_b32 s45, {f32(NLOG2E)}
s_waitcnt lgkmcnt(0)
s_barrier
s_cmp_ge_u32 s3, 8
s_cbranch_scc1 K2_EPI_P1
""")
for mt in range(3):
    for s in range(4):
        i("ds_read_b128 %s, v8 offset:%d" % (vr(16 + 16 * (mt & 1) + 4 * s, 4), M_MH + mt * 16 * 272 + s * 64))
    if mt == 0:
        i("s_waitcnt vmcnt(0)")
    for s in range(4):
        i("s_waitcnt lgkmcnt(%d)" % (3 - s))
        i(mf16(ACM + 4 * mt, 16 + 16 * (mt & 1) + 4 * s, WF + 16 + 4 * s))
HV, NO = 48, 64
i(f"""
s_lshl_b32 s13, s3, 5
v_lshl_add_u32 v9, v5, 1, s13
v_lshlrev_b32 v10, 2, v6
v_mad_u32_u24 v10, v10, s12, v9
v_add_u32 v10, {M_H}, v10
v_lshlrev_b32 v11, 4, v6
v_add_u32 v11, {M_NOD}, v11
""")
for mt in range(3):
    i("ds_read_b128 %s, v11 offset:%d" % (vr(NO + 4 * mt, 4), mt * 64))
for mt in range(3):
    for k in range(4):
        i("ds_read_u16 v%d, v10 offset:%d" % (HV + 4 * mt + k, (16 * mt + k) * 272))
i("s_nop 4")
for r in range(12):
    i("v_fma_f32 v%d, v%d, s44, v%d" % (ACH + r, ACM + r, ACH + r))
for r in range(12):
    i("v_mul_f32 v%d, s45, v%d" % (ACM + r, ACH + r))
for r in range(12):
    i("v_exp_f32 v%d, v%d" % (ACM + r, ACM + r))
for r in range(12):
    i("v_add_f32 v%d, 1.0, v%d" % (ACM + r, ACM + r))
for r in range(12):
    i("v_rcp_f32 v%d, v%d" % (ACM + r, ACM + r))
i("s_waitcnt lgkmcnt(0)")
for r in range(12):
    i("v_lshlrev_b32 v%d, 16, v%d" % (HV + r, HV + r))
    i("v_add_u32 v%d, v%d, v9" % (NO + r, NO + r))
for r in range(12):
    i("v_fma_f32 v%d, v%d, v%d, v%d" % (ACH + r, ACH + r, ACM + r, HV + r))
    i("v_cvt_pk_bf16_f32 v%d, v%d, v%d" % (ACH + r, ACH + r, ACH + r))
    i("buffer_store_short v%d, v%d, s[36:39], 0 offen" % (ACH + r, NO + r))
i("s_endpgm")
e("K2_EPI_P1:")
i(f"""
s_sub_u32 s14, s3, 8
s_mul_i32 s14, s14, {16*272}
v_add_u32 v8, s14, v8
""")
for s in range(4):
    i("ds_read_b128 %s, v8 offset:%d" % (vr(16 + 4 * s, 4), M_MP + s * 64))
i("s_waitcnt vmcnt(0)")
for s in range(4):
    i("s_waitcnt lgkmcnt(%d)" % (3 - s))
    i(mf16(ACH, 16 + 4 * s, WF + 4 * s))
i(f"""
v_cmp_eq_u32 vcc, 1, v5
v_cmp_eq_u32 s[14:15], 2, v5
v_cmp_eq_u32 s[46:47], 3, v5
v_lshlrev_b32 v10, 16, v10
s_mov_b32 s13, 2560000
s_nop 4
v_cndmask_b32 v{ACH}, v{ACH}, v{ACH+1}, vcc
v_cndmask_b32 v{ACH}, v{ACH}, v{ACH+2}, s[14:15]
v_cndmask_b32 v{ACH}, v{ACH}, v{ACH+3}, s[46:47]
v_fma_f32 v{ACH}, v{ACH}, s44, v10
v_cvt_pk_bf16_f32 v{ACH}, v{ACH}, v{ACH}
buffer_store_short v{ACH}, v11, s[36:39], s13 offen
""")
e("K2_END:")
i("s_endpgm")

e('.section .rodata,"a"')
for name, nv, ns in ((K1, 160, 80), (K2, 128, 64)):
    e(".p2align 6")
    e(".amdhsa_kernel %s" % name)
    e("  .amdhsa_next_free_vgpr %d" % nv)
    e("  .amdhsa_next_free_sgpr %d" % ns)
    e("  .amdhsa_accum_offset %d" % nv)
    e("  .amdhsa_group_segment_fixed_size 0")
    e("  .amdhsa_kernarg_size 88")
    e("  .amdhsa_user_sgpr_count 2")
    e("  .amdhsa_user_sgpr_kernarg_segment_ptr 1")
    e("  .amdhsa_system_sgpr_workgroup_id_x 1")
    e(".end_amdhsa_kernel")

open(OUT, "w").write("\n".join(L) + "\n")
print("wrote", OUT, "K2_LDS", K2_LDS, "M_OFF", M_OFF, "M_CNT", M_CNT, "M_NOD", M_NOD, "M_H", M_H)
```

```python
import sys, struct

OUT = sys.argv[1] if len(sys.argv) > 1 else "gather_scatter__cheap_equivariant_egnn__graph.s"

import os
PROF = int(os.environ.get("PROF", "0"))
EXP = os.environ.get("EXP", "")
SC1 = " sc1" if "sc1" in EXP else (" nt" if "ntst" in EXP else "")
L = []
def stamp(k):
    if PROF:
        i("s_memrealtime s[%d:%d]" % (72 + 2 * k, 73 + 2 * k))
        i("s_waitcnt lgkmcnt(0)")
def prof_out(kern, wsreg, nst):
    if not PROF:
        return
    stamp(nst)
    i(f"""
    s_mov_b64 exec, 1
    v_lshrrev_b32 v1, 6, v0
    v_lshlrev_b32 v1, 6, v1
    s_lshl_b32 s98, s2, 10
    s_add_u32 s98, s98, {0x2000000 + kern * 0x100000}
    s_add_u32 s98, s{wsreg}, s98
    s_addc_u32 s99, s{wsreg+1}, 0
    """)
    for k in range(nst + 1):
        i("v_mov_b32 v2, s%d" % (72 + 2 * k))
        i("global_store_dword v1, v2, s[98:99] offset:%d" % (4 * k))
    if kern == 1:
        i("s_memtime s[68:69]")
        i("s_waitcnt lgkmcnt(0)")
        i("s_sub_u32 s68, s68, s66")
        i("v_mov_b32 v2, s68")
        i("global_store_dword v1, v2, s[98:99] offset:60")
        i("v_mov_b32 v2, s65")
        i("global_store_dword v1, v2, s[98:99] offset:56")
def e(s=""):
    L.append(s)
def c(s):
    L.append("    ; " + s)
def i(s):
    for ln in s.strip().split("\n"):
        L.append("    " + ln.strip())
def f32(x):
    return "0x%08x" % struct.unpack("<I", struct.pack("<f", x))[0]
def vr(a, n):
    return "v[%d:%d]" % (a, a + n - 1)

N, E = 10000, 320000
NCH, CH = 125, 2560
NLOG2E = -1.4426950408889634
NLN2 = -0.6931471805599453
GMAGIC = 879609344

WS_B, WS_A, WS_RA, WS_RB = 0x1000, 0x280000, 0x500000, 0xA00000
WS_OFF, WS_WH, WS_WS, WS_WX = 0xC00000, 0xC40000, 0xC60000, 0xC61000
WS_USED = 0x1000000

B_POS, B_CNT, B_OFS, B_STA, B_STB, B_END = 0, 61440, 62464, 63488, 104448, 114688
G_W, G_H = 0, 40960
K1_LDS = 114688

CAP = 240
NSLOT = 8 * CAP
M_REC = 0
M_ONE = M_REC + NSLOT * 16
M_ST = M_ONE + NSLOT * 16
M_OFF = M_ST + NSLOT * 40 + 64
M_CNT = M_OFF + NSLOT * 4 + 128
M_NOD = M_CNT + 64
M_H = M_NOD + 192
M_END = M_H + 48 * 272
K2_LDS = M_END
M_MH = 0
M_MP = 48 * 272
assert K2_LDS <= 163840, K2_LDS
assert M_OFF % 16 == 0 and M_CNT % 16 == 0 and M_NOD % 16 == 0 and M_H % 16 == 0

K1 = "egnn_prep_kernel"
K2 = "gather_scatter__cheap_equivariant_egnn__graph_kernel"

hdr = open("gather_scatter__cheap_equivariant_egnn__graph.s.ref").read().split("\n")
for ln in hdr:
    if ln.startswith("; Override") or "@launch" in ln or ln.startswith("; grid="):
        continue
    if not ln.startswith(";"):
        break
    e(ln)
e("; @launch kernel=%s grid=(256,1,1) block=(640,1,1) lds=%d" % (K1, K1_LDS))
e("; @launch kernel=%s grid=(256,1,1) block=(1024,1,1) lds=%d" % (K2, K2_LDS))
e('.amdgcn_target "amdgcn-amd-amdhsa--gfx950"')
e(".text")

e(".globl %s" % K1)
e(".p2align 8")
e(".type %s,@function" % K1)
e("%s:" % K1)
i("""
s_cmp_ge_u32 s2, 256
s_cbranch_scc1 K1_END
s_load_dwordx16 s[16:31], s[0:1], 0
s_load_dwordx2 s[32:33], s[0:1], 80
""")
stamp(0)
i("""
s_cmp_ge_u32 s2, 251
s_cbranch_scc1 K1_PREP
s_cmp_ge_u32 s2, %d
s_cbranch_scc1 K1_GEMM
""" % NCH)
c("---------------- role: binning ----------------")
i("""
v_lshlrev_b32 v1, 4, v0
v_lshlrev_b32 v2, 5, v0
v_lshlrev_b32 v3, 2, v0
v_mov_b32 v56, 0
v_mov_b32 v57, 1
v_mov_b32 v58, 127
s_mul_i32 s34, s2, 10240
s_lshl_b32 s35, s34, 1
s_movk_i32 s48, 10240
s_movk_i32 s49, 20480
s_movk_i32 s50, 30720
s_mov_b32 s51, 40960
s_mov_b32 s52, 51200
s_mov_b32 s53, %d
s_movk_i32 s54, 625
s_mov_b32 s55, 0xffff0000
ds_write_b32 v3, v56 offset:%d
s_waitcnt lgkmcnt(0)
s_add_u32 s36, s24, s34
s_addc_u32 s37, s25, 0
s_add_u32 s38, s22, s34
s_addc_u32 s39, s23, 0
s_add_u32 s40, s20, s35
s_addc_u32 s41, s21, 0
s_mov_b32 s44, s18
s_mov_b32 s45, s19
s_mov_b32 s46, 60000
s_mov_b32 s47, 0x20000
global_load_dwordx4 v[4:7], v1, s[36:37]
global_load_dwordx4 v[8:11], v1, s[38:39]
buffer_load_dwordx4 v[20:23], v1, s[44:47], 0 offen
buffer_load_dwordx4 v[24:27], v1, s[44:47], s48 offen
buffer_load_dwordx4 v[28:31], v1, s[44:47], s49 offen
buffer_load_dwordx4 v[32:35], v1, s[44:47], s50 offen
buffer_load_dwordx4 v[36:39], v1, s[44:47], s51 offen
buffer_load_dwordx4 v[40:43], v1, s[44:47], s52 offen
global_load_dwordx4 v[12:15], v2, s[40:41]
global_load_dwordx4 v[16:19], v2, s[40:41] offset:16
s_barrier
s_waitcnt vmcnt(9)
""" % (GMAGIC, B_CNT))
stamp(1)
for k in range(4):
    i("v_mul_hi_u32 v%d, v%d, s53" % (44 + k, 4 + k))
for k in range(4):
    i("v_lshrrev_b32 v%d, 1, v%d" % (48 + k, 44 + k))
    i("v_and_b32 v%d, 0x3fc, v%d" % (48 + k, 48 + k))
    i("ds_add_rtn_u32 v%d, v%d, v57 offset:%d" % (52 + k, 48 + k, B_CNT))
i("s_waitcnt vmcnt(8)")
for k in range(4):
    i("""
    v_mad_u32_u24 v59, v%d, s54, v58
    v_lshrrev_b32 v59, 7, v59
    v_sub_u32 v59, v%d, v59
    v_and_b32 v%d, 7, v%d
    v_lshl_or_b32 v59, v%d, 3, v59
    v_lshl_or_b32 v%d, v%d, 8, v59
    """ % (44 + k, 4 + k, 44 + k, 44 + k, 44 + k, 60 + k, 8 + k))
for k in range(4):
    i("""
    v_mul_u32_u24 v%d, 6, v%d
    v_mul_u32_u24 v%d, 6, v%d
    v_and_b32 v%d, -4, v%d
    v_and_b32 v%d, -4, v%d
    v_lshlrev_b32 v%d, 4, v%d
    v_lshlrev_b32 v%d, 4, v%d
    """ % (64 + k, 4 + k, 68 + k, 8 + k, 64 + k, 64 + k, 68 + k, 68 + k, 4 + k, 4 + k, 8 + k, 8 + k))
for it in range(6):
    i("s_waitcnt vmcnt(%d)" % (7 - it))
    i("ds_write_b128 v1, %s offset:%d" % (vr(20 + 4 * it, 4), B_POS + it * 10240))
i("""
v_and_b32 v72, 63, v0
v_lshlrev_b32 v72, 4, v72
s_waitcnt lgkmcnt(0)
""")
stamp(2)
i("s_barrier")
stamp(3)
i("""
ds_read_b128 v[20:23], v72 offset:%d
""" % B_CNT)
for k in range(4):
    i("ds_read2_b32 %s, v%d offset0:0 offset1:1" % (vr(24 + 4 * k, 2), 64 + k))
    i("ds_read2_b32 %s, v%d offset0:0 offset1:1" % (vr(26 + 4 * k, 2), 68 + k))
c("scan of 256 counters (every wave, redundantly)")
i("""
s_waitcnt lgkmcnt(8)
v_add_u32 v41, v20, v21
v_add_u32 v42, v41, v22
v_add_u32 v43, v42, v23
v_mov_b32 v40, v43
s_nop 1
v_add_u32_dpp v40, v40, v40 row_shr:1 row_mask:0xf bank_mask:0xf bound_ctrl:0
s_nop 1
v_add_u32_dpp v40, v40, v40 row_shr:2 row_mask:0xf bank_mask:0xf bound_ctrl:0
s_nop 1
v_add_u32_dpp v40, v40, v40 row_shr:4 row_mask:0xf bank_mask:0xf bound_ctrl:0
s_nop 1
v_add_u32_dpp v40, v40, v40 row_shr:8 row_mask:0xf bank_mask:0xf bound_ctrl:0
s_nop 1
v_add_u32_dpp v40, v40, v40 row_bcast:15 row_mask:0xa bank_mask:0xf
s_nop 1
v_add_u32_dpp v40, v40, v40 row_bcast:31 row_mask:0xc bank_mask:0xf
v_sub_u32 v76, v40, v43
v_add_u32 v77, v76, v20
v_add_u32 v78, v76, v41
v_add_u32 v79, v76, v42
ds_write_b128 v72, v[76:79] offset:%d
""" % B_OFS)
for k in range(4):
    i("ds_read_b32 v%d, v%d offset:%d" % (80 + k, 48 + k, B_OFS))
c("wave 0 publishes (start | count<<16) to OFFS[bucket][chunk]")
i("""
v_readfirstlane_b32 s56, v0
s_lshl_b32 s57, s2, 2
s_add_u32 s58, s32, s57
s_addc_u32 s59, s33, 0
s_add_u32 s58, s58, %d
s_addc_u32 s59, s59, 0
s_cmp_lg_u32 s56, 0
s_cbranch_scc1 K1_BIN_NOPUB
v_lshlrev_b32 v73, 7, v72
v_lshl_or_b32 v84, v20, 16, v76
v_lshl_or_b32 v85, v21, 16, v77
v_lshl_or_b32 v86, v22, 16, v78
v_lshl_or_b32 v87, v23, 16, v79
global_store_dword v73, v84, s[58:59]
global_store_dword v73, v85, s[58:59] offset:512
global_store_dword v73, v86, s[58:59] offset:1024
global_store_dword v73, v87, s[58:59] offset:1536
""" % WS_OFF)
e("K1_BIN_NOPUB:")
i("s_waitcnt lgkmcnt(5)")
for k in range(4):
    d0, d1, s0, s1 = 24 + 4 * k, 25 + 4 * k, 26 + 4 * k, 27 + 4 * k
    r0, r1 = 88 + 2 * k, 89 + 2 * k
    i(f"""
    v_alignbit_b32 v{d0}, v{d1}, v{d0}, v{4+k}
    v_lshrrev_b32 v{d1}, v{4+k}, v{d1}
    v_alignbit_b32 v{s0}, v{s1}, v{s0}, v{8+k}
    v_lshrrev_b32 v{s1}, v{8+k}, v{s1}
    v_lshlrev_b32 v40, 16, v{d0}
    v_lshlrev_b32 v41, 16, v{s0}
    v_and_b32 v{d0}, s55, v{d0}
    v_and_b32 v{s0}, s55, v{s0}
    v_lshlrev_b32 v{d1}, 16, v{d1}
    v_lshlrev_b32 v{s1}, 16, v{s1}
    v_sub_f32 v40, v40, v41
    v_sub_f32 v41, v{d0}, v{s0}
    v_sub_f32 v42, v{d1}, v{s1}
    v_cvt_pk_bf16_f32 v{r0}, v40, v41
    v_cvt_pk_bf16_f32 v42, v42, v42
    v_lshlrev_b32 v40, 16, v{r0}
    v_and_b32 v41, s55, v{r0}
    v_and_b32 v42, s55, v42
    v_mul_f32 v40, v40, v40
    v_mul_f32 v41, v41, v41
    v_mul_f32 v43, v42, v42
    v_cvt_pk_bf16_f32 v40, v40, v41
    v_cvt_pk_bf16_f32 v43, v43, v43
    v_lshlrev_b32 v41, 16, v40
    v_and_b32 v40, s55, v40
    v_and_b32 v43, s55, v43
    v_add_f32 v40, v40, v41
    v_add_f32 v40, v40, v43
    v_cvt_pk_bf16_f32 v{r1}, v42, v40
    """)
i("s_waitcnt vmcnt(0) lgkmcnt(0)")
stamp(4)
for k in range(4):
    i(f"""
    v_add_u32 v{80+k}, v{80+k}, v{52+k}
    v_lshlrev_b32 v40, 4, v{80+k}
    v_add_u32 v40, {B_STA}, v40
    v_lshlrev_b32 v41, 2, v{80+k}
    v_add_u32 v41, {B_STB}, v41
    ds_write2_b64 v40, {vr(12+2*k,2)}, {vr(88+2*k,2)} offset0:0 offset1:1
    ds_write_b32 v41, v{60+k}
    """)
i(f"""
v_add_u32 v2, {B_STA}, v1
s_mul_i32 s57, s2, 40960
s_add_u32 s60, s32, s57
s_addc_u32 s61, s33, 0
s_add_u32 s60, s60, {WS_RA}
s_addc_u32 s61, s61, 0
s_mov_b32 s62, 40960
s_mov_b32 s63, 0x20000
s_add_u32 s64, s32, s34
s_addc_u32 s65, s33, 0
s_add_u32 s64, s64, {WS_RB}
s_addc_u32 s65, s65, 0
s_waitcnt lgkmcnt(0)
s_barrier
""")
stamp(5)
i(f"""
ds_read_b128 v[20:23], v2
ds_read_b128 v[24:27], v2 offset:10240
ds_read_b128 v[28:31], v2 offset:20480
ds_read_b128 v[32:35], v2 offset:30720
ds_read_b128 v[36:39], v2 offset:40960
s_waitcnt lgkmcnt(4)
buffer_store_dwordx4 v[20:23], v1, s[60:63], 0 offen{SC1}
s_waitcnt lgkmcnt(3)
buffer_store_dwordx4 v[24:27], v1, s[60:63], s48 offen{SC1}
s_waitcnt lgkmcnt(2)
buffer_store_dwordx4 v[28:31], v1, s[60:63], s49 offen{SC1}
s_waitcnt lgkmcnt(1)
buffer_store_dwordx4 v[32:35], v1, s[60:63], s50 offen{SC1}
s_waitcnt lgkmcnt(0)
global_store_dwordx4 v1, v[36:39], s[64:65]{SC1}
""")
if PROF:
    stamp(6)
    i("s_waitcnt vmcnt(0)")
prof_out(0, 32, 7)
i("s_endpgm")
assert B_STB - B_STA == 40960

c("---------------- role: node GEMM (A' = -log2e * h@W1, B' = -log2e * h@W2) ----------------")
e("K1_GEMM:")
i(f"""
s_sub_u32 s34, s2, {NCH}
s_and_b32 s35, s34, 1
s_lshr_b32 s36, s34, 1
s_mul_i32 s37, s36, 40960
s_lshl_b32 s38, s35, 15
v_lshlrev_b32 v1, 4, v0
v_lshrrev_b32 v2, 4, v0
v_and_b32 v3, 15, v0
v_lshlrev_b32 v3, 4, v3
s_movk_i32 s39, 320
s_movk_i32 s40, 272
v_mad_u32_u24 v4, v2, s39, v3
v_mad_u32_u24 v5, v2, s40, v3
s_movk_i32 s48, 10240
s_movk_i32 s49, 20480
s_movk_i32 s50, 30720
s_waitcnt lgkmcnt(0)
s_add_u32 s44, s26, s38
s_addc_u32 s45, s27, 0
s_mov_b32 s46, 32768
s_mov_b32 s47, 0x20000
s_mov_b32 s52, s16
s_mov_b32 s53, s17
s_mov_b32 s54, 2560000
s_mov_b32 s55, 0x20000
v_add_u32 v6, s37, v1
buffer_load_dwordx4 v[8:11], v1, s[44:47], 0 offen
buffer_load_dwordx4 v[12:15], v1, s[44:47], s48 offen
buffer_load_dwordx4 v[16:19], v1, s[44:47], s49 offen
buffer_load_dwordx4 v[20:23], v1, s[44:47], s50 offen
buffer_load_dwordx4 v[24:27], v6, s[52:55], 0 offen
buffer_load_dwordx4 v[28:31], v6, s[52:55], s48 offen
buffer_load_dwordx4 v[32:35], v6, s[52:55], s49 offen
buffer_load_dwordx4 v[36:39], v6, s[52:55], s50 offen
v_lshrrev_b32 v7, 6, v0
v_and_b32 v40, 63, v0
v_cmp_gt_u32 vcc, 128, v0
v_readfirstlane_b32 s41, v7
s_and_b32 s42, s41, 1
s_lshr_b32 s43, s41, 1
""")
i(f"""
s_waitcnt vmcnt(7)
ds_write_b128 v4, v[8:11] offset:{G_W}
s_waitcnt vmcnt(6)
ds_write_b128 v4, v[12:15] offset:{G_W+12800}
s_waitcnt vmcnt(5)
ds_write_b128 v4, v[16:19] offset:{G_W+25600}
s_waitcnt vmcnt(4)
s_and_saveexec_b64 s[56:57], vcc
ds_write_b128 v4, v[20:23] offset:{G_W+38400}
s_mov_b64 exec, s[56:57]
v_add_u32 v5, {G_H}, v5
s_waitcnt vmcnt(3)
ds_write_b128 v5, v[24:27]
s_waitcnt vmcnt(2)
ds_write_b128 v5, v[28:31] offset:{40*272}
s_waitcnt vmcnt(1)
ds_write_b128 v5, v[32:35] offset:{80*272}
s_waitcnt vmcnt(0)
ds_write_b128 v5, v[36:39] offset:{120*272}
""")
i(f"""
v_lshrrev_b32 v41, 5, v40
v_bfe_u32 v42, v40, 2, 2
v_lshl_add_u32 v42, v41, 3, v42
v_mul_u32_u24 v42, 320, v42
v_bfe_u32 v43, v40, 4, 1
v_lshlrev_b32 v43, 5, v43
v_and_b32 v44, 3, v40
v_lshl_add_u32 v43, v44, 3, v43
v_add_u32 v42, v42, v43
s_lshl_b32 s58, s42, 7
v_add_u32 v42, s58, v42
v_and_b32 v44, 31, v40
s_lshl_b32 s59, s43, 5
v_add_u32 v45, s59, v44
v_mul_u32_u24 v45, 272, v45
v_lshl_add_u32 v45, v41, 4, v45
v_add_u32 v45, {G_H}, v45
""")
for r in range(32):
    i("v_mov_b32 v%d, 0" % (64 + r))
i("""
s_waitcnt lgkmcnt(0)
""")
stamp(1)
i("s_barrier")
stamp(2)
def gemm_reads(s):
    i("ds_read_b128 %s, v45 offset:%d" % (vr(8 + 4 * s, 4), s * 32))
    for t in range(2):
        for b in range(2):
            i("ds_read_b64_tr_b16 %s, v42 offset:%d" % (vr(96 + 32 * t + 4 * s + 2 * b, 2), G_W + (16 * s + 4 * b) * 320 + t * 64))
for s in range(3):
    gemm_reads(s)
for s in range(8):
    rem = min(2, 7 - s)
    i("s_waitcnt lgkmcnt(%d)" % (5 * rem))
    i("v_mfma_f32_32x32x16_bf16 v[64:79], %s, %s, v[64:79]" % (vr(8 + 4 * s, 4), vr(96 + 4 * s, 4)))
    i("v_mfma_f32_32x32x16_bf16 v[80:95], %s, %s, v[80:95]" % (vr(8 + 4 * s, 4), vr(128 + 4 * s, 4)))
    if s + 3 < 8:
        gemm_reads(s + 3)
i(f"""
s_mul_i32 s60, s36, 160
s_add_u32 s60, s60, s59
s_lshl_b32 s60, s60, 8
s_add_u32 s60, s60, s58
v_lshlrev_b32 v46, 10, v41
v_lshl_add_u32 v46, v44, 2, v46
v_add_u32 v46, s60, v46
s_mov_b32 s61, {WS_A}
s_cmp_eq_u32 s35, 1
s_cselect_b32 s61, {WS_B}, s61
s_add_u32 s64, s32, s61
s_addc_u32 s65, s33, 0
s_mov_b32 s66, 2560000
s_mov_b32 s67, 0x20000
s_movk_i32 s62, 4096
s_mov_b32 s68, {f32(NLOG2E)}
s_mov_b32 s69, {f32(NLOG2E)}
s_mov_b32 s70, 0xffff0000
s_mov_b32 s71, 0x80000000
s_nop 4
""")
stamp(3)
for r in range(0, 32, 2):
    i("v_pk_mul_f32 %s, %s, s[68:69]" % (vr(64 + r, 2), vr(64 + r, 2)))
def gstore(reg, r):
    row = 8 * (r >> 2) + (r & 3)
    if row < 16:
        i("buffer_store_dword v%d, v46, s[64:67], 0 offen offset:%d%s" % (reg, row * 256, SC1 if "gsc" in EXP else ""))
    else:
        i("buffer_store_dword v%d, v46, s[64:67], s62 offen offset:%d%s" % (reg, (row - 16) * 256, SC1 if "gsc" in EXP else ""))
i("s_cmp_eq_u32 s35, 1")
i("s_cbranch_scc1 K1_GEMM_B")
for r in range(16):
    i("v_cvt_pk_bf16_f32 v%d, v%d, v%d" % (8 + r, 64 + r, 80 + r))
    gstore(8 + r, r)
if PROF:
    stamp(4)
    i("s_waitcnt vmcnt(0)")
prof_out(0, 32, 5)
i("s_endpgm")
e("K1_GEMM_B:")
c("low half = bf16(x0); high half chosen so that the whole dword read as f32 is nearest to x1")
for r in range(16):
    i(f"""
    v_cvt_pk_bf16_f32 v{8+r}, v{64+r}, 0
    v_and_b32 v47, 0x7fffffff, v{80+r}
    v_add_u32 v47, 0x8000, v47
    v_sub_u32 v47, v47, v{8+r} clamp
    v_and_or_b32 v47, v47, s70, v{8+r}
    v_bfi_b32 v{8+r}, s71, v{80+r}, v47
    """)
    gstore(8 + r, r)
if PROF:
    stamp(4)
    i("s_waitcnt vmcnt(0)")
prof_out(0, 32, 5)
i("s_endpgm")

c("---------------- role: weight fragment prep ----------------")
e("K1_PREP:")
i(f"""
v_lshrrev_b32 v7, 6, v0
v_and_b32 v40, 63, v0
s_sub_u32 s34, s2, 251
v_readfirstlane_b32 s41, v7
s_cmp_eq_u32 s34, 4
s_cbranch_scc1 K1_SMALL
s_lshl_b32 s35, s34, 4
s_add_u32 s35, s35, s41
s_add_u32 s36, s35, 10
s_lshl_b32 s37, s34, 4
s_add_u32 s37, s37, 16
v_and_b32 v41, 15, v40
v_lshrrev_b32 v42, 4, v40
v_lshlrev_b32 v43, 4, v40
s_waitcnt lgkmcnt(0)
s_mov_b32 s44, s30
s_mov_b32 s45, s31
s_mov_b32 s46, 65536
s_mov_b32 s47, 0x20000
s_add_u32 s52, s32, {WS_WH}
s_addc_u32 s53, s33, 0
s_mov_b32 s54, 65536
s_mov_b32 s55, 0x20000
""")
e("K1_PREP_LOOP:")
i("""
s_lshr_b32 s38, s35, 3
s_and_b32 s39, s35, 7
s_lshl_b32 s40, s38, 5
v_lshl_add_u32 v44, v41, 1, s40
s_cmp_ge_u32 s39, 4
s_cbranch_scc1 K1_PREP_M
s_lshl_b32 s48, s39, 13
v_lshl_add_u32 v44, v42, 11, v44
""")
for j in range(8):
    i("buffer_load_ushort v%d, v44, s[44:47], s48 offen offset:%d" % (16 + j, j * 256))
i("s_branch K1_PREP_ST")
e("K1_PREP_M:")
i("""
s_sub_u32 s39, s39, 4
s_lshr_b32 s48, s39, 1
s_lshl_b32 s48, s48, 6
s_and_b32 s49, s39, 1
s_lshl_b32 s49, s49, 4
s_add_u32 s48, s48, s49
s_add_u32 s48, s48, 128
s_lshl_b32 s48, s48, 8
s_add_u32 s49, s48, 8192
v_lshl_add_u32 v44, v42, 10, v44
""")
for j in range(8):
    i("buffer_load_ushort v%d, v44, s[44:47], s%d offen offset:%d" % (16 + j, 49 if j & 1 else 48, (j >> 1) * 256))
e("K1_PREP_ST:")
i("""
s_lshl_b32 s50, s35, 10
s_waitcnt vmcnt(0)
v_lshl_or_b32 v8, v17, 16, v16
v_lshl_or_b32 v9, v19, 16, v18
v_lshl_or_b32 v10, v21, 16, v20
v_lshl_or_b32 v11, v23, 16, v22
buffer_store_dwordx4 v[8:11], v43, s[52:55], s50 offen
s_add_u32 s35, s35, 10
s_cmp_lt_u32 s35, s37
s_nop 1
s_cbranch_scc1 K1_PREP_LOOP
s_endpgm
""")
e("K1_SMALL:")
c("threads 0..127: WSM[f] = -log2e*{Wa0..3,0,0,0,w_d}[f]; WXP[p] = wx[phi(p)]")
i(f"""
s_cmp_ge_u32 s41, 2
s_cbranch_scc1 K1_END
v_lshlrev_b32 v1, 1, v0
v_lshlrev_b32 v2, 4, v0
v_and_b32 v3, 64, v0
v_and_b32 v4, 1, v0
v_lshl_or_b32 v3, v4, 5, v3
v_bfe_u32 v4, v0, 1, 5
v_add_lshl_u32 v3, v3, v4, 1
s_waitcnt lgkmcnt(0)
s_add_u32 s44, s26, 65536
s_addc_u32 s45, s27, 0
s_add_u32 s52, s32, {WS_WS}
s_addc_u32 s53, s33, 0
s_add_u32 s54, s32, {WS_WX}
s_addc_u32 s55, s33, 0
s_mov_b32 s68, {f32(NLOG2E)}
global_load_ushort v8, v1, s[44:45]
global_load_ushort v9, v1, s[44:45] offset:256
global_load_ushort v10, v1, s[44:45] offset:512
global_load_ushort v11, v1, s[44:45] offset:768
global_load_ushort v12, v1, s[44:45] offset:1024
global_load_ushort v13, v3, s[28:29]
s_waitcnt vmcnt(0)
""")
for k in range(5):
    i("v_lshlrev_b32 v%d, 16, v%d" % (8 + k, 8 + k))
    i("v_mul_f32 v%d, s68, v%d" % (8 + k, 8 + k))
i("""
v_cvt_pk_bf16_f32 v16, v9, v10
v_cvt_pk_bf16_f32 v17, v11, v12
v_mov_b32 v18, 0
v_cvt_pk_bf16_f32 v19, 0, v8
global_store_dwordx4 v2, v[16:19], s[52:53]
global_store_short v1, v13, s[54:55]
""")
e("K1_END:")
i("s_endpgm")

G0, G1, D0, D1, LL, T, P, P2, X, S0, S1, W0, W1 = 16, 32, 48, 64, 80, 96, 104, 108, 112, 116, 120, 124, 12
O = 96
e(".globl %s" % K2)
e(".p2align 8")
e(".type %s,@function" % K2)
e("%s:" % K2)
i(f"""
s_cmp_ge_u32 s2, 256
s_cbranch_scc1 K2_END
s_load_dwordx4 s[16:19], s[0:1], 0
s_load_dwordx2 s[20:21], s[0:1], 64
s_load_dwordx2 s[22:23], s[0:1], 80
v_lshrrev_b32 v1, 6, v0
v_lshrrev_b32 v2, 4, v0
v_readfirstlane_b32 s3, v1
s_lshr_b32 s4, s3, 1
s_and_b32 s5, s3, 1
s_mov_b32 s6, 0
s_mov_b32 s7, 32
s_lshl_b32 s8, s2, 9
s_add_u32 s8, s8, {WS_OFF}
v_lshlrev_b32 v3, 2, v2
s_waitcnt lgkmcnt(0)
""")
stamp(0)
if PROF:
    i("s_memtime s[66:67]")
    i("s_waitcnt lgkmcnt(0)")
i(f"""
s_mov_b32 s24, s22
s_mov_b32 s25, s23
s_mov_b32 s26, {WS_USED}
s_mov_b32 s27, 0x20000
buffer_load_dword v4, v3, s[24:27], s8 offen
buffer_load_dword v5, v3, s[24:27], s8 offen offset:256
""")
c("gather SRD (add_tid, stride 4): base = ws + WS_B - 128 + H*128")
i(f"""
s_lshl_b32 s9, s5, 7
s_add_u32 s9, s9, {WS_B - 128}
s_add_u32 s28, s22, s9
s_addc_u32 s29, s23, 0
s_and_b32 s29, s29, 0xffff
s_or_b32 s29, s29, 0x40000
s_mov_b32 s30, 0x1000000
s_mov_b32 s31, 0x00800000
s_mov_b32 s32, s16
s_mov_b32 s33, s17
s_mov_b32 s34, 2560000
s_mov_b32 s35, 0x20000
s_mov_b32 s36, s20
s_mov_b32 s37, s21
s_mov_b32 s38, 2620000
s_mov_b32 s39, 0x20000
s_movk_i32 s10, 625
s_lshl_b32 s11, s2, 3
""")
c("h tile (row m = t>>4 <48): node(m) = n0(8b + m/5) + m%5 ; NODEOFF table")
i(f"""
v_mul_u32_u24 v6, 52, v2
v_lshrrev_b32 v6, 8, v6
v_mul_u32_u24 v7, 5, v6
v_sub_u32 v7, v2, v7
v_add_u32 v6, s11, v6
v_mul_u32_u24 v8, s10, v6
v_add_u32 v9, 752, v8
v_add_u32 v8, 127, v8
v_lshrrev_b32 v9, 7, v9
v_lshrrev_b32 v8, 7, v8
v_add_u32 v8, v8, v7
v_cmp_lt_u32 vcc, v8, v9
v_cmp_gt_u32 s[12:13], 40, v2
v_lshlrev_b32 v8, 8, v8
v_bfrev_b32 v9, 1
s_and_b64 vcc, vcc, s[12:13]
v_and_b32 v10, 15, v0
v_cndmask_b32 v8, v9, v8, vcc
v_lshl_add_u32 v11, v10, 4, v8
buffer_load_dwordx4 {vr(LL,4)}, v11, s[32:35], 0 offen
v_cmp_gt_u32 vcc, 768, v0
s_movk_i32 s12, 272
v_lshlrev_b32 v10, 4, v10
v_mad_u32_u24 v11, v2, s12, v10
v_add_u32 v3, {M_NOD}, v3
s_and_saveexec_b64 s[14:15], vcc
ds_write_b32 v3, v8
s_mov_b64 exec, s[14:15]
""")
c("W fragments: lanes<32 WSM rows, lanes>=32 A' rows of the group's nodes")
i(f"""
v_and_b32 v6, 63, v0
v_and_b32 v7, 31, v0
s_add_u32 s12, s11, s4
s_mul_i32 s12, s12, 625
s_add_u32 s12, s12, 127
s_lshr_b32 s12, s12, 7
s_lshl_b32 s13, s5, 7
v_lshlrev_b32 v9, 2, v7
v_add_u32 v9, s13, v9
s_lshl_b32 s13, s5, 10
s_add_u32 s13, s13, {WS_WS}
v_lshlrev_b32 v10, 4, v7
buffer_load_dwordx4 {vr(W0,4)}, v10, s[24:27], s13 offen
buffer_load_dwordx4 {vr(W1,4)}, v10, s[24:27], s13 offen offset:512
""")
for k in range(5):
    i(f"""
    s_add_u32 s13, s12, {k}
    s_min_u32 s13, s13, 9999
    s_lshl_b32 s13, s13, 8
    s_add_u32 s13, s13, {WS_A}
    buffer_load_dword v{LL+4+k}, v9, s[24:27], s13 offen
    """)
if "pref" in EXP:
    i(f"""
    s_lshr_b32 s13, s2, 3
    s_mul_i32 s13, s13, 81920
    s_add_u32 s13, s13, {WS_B}
    v_lshlrev_b32 v9, 7, v0
    v_cmp_gt_u32 vcc, 640, v0
    v_bfrev_b32 v10, 1
    s_nop 0
    v_cndmask_b32 v9, v10, v9, vcc
    buffer_load_dword v{LL+15}, v9, s[24:27], s13 offen
    """)
c("main loop LDS addresses")
for r in range(32):
    i("v_mov_b32 v%d, 0" % (G0 + r))
e("K2_ROUND:")
c("zero fill REC/ONE/ST, OFF=128, counters=0")
i(f"""
v_lshlrev_b32 v6, 4, v0
v_mov_b32 v{T}, 0
v_mov_b32 v{T+1}, 0
v_mov_b32 v{T+2}, 0
v_mov_b32 v{T+3}, 0
v_mov_b32 v{T+4}, 128
v_mov_b32 v{T+5}, 128
v_mov_b32 v{T+6}, 128
v_mov_b32 v{T+7}, 128
v_add_u32 v7, 65536, v6
v_add_u32 v8, 131072, v6
""")
nz = M_OFF // 16384
remz = M_OFF - nz * 16384
for k in range(nz):
    base = "v6" if k < 4 else ("v7" if k < 8 else "v8")
    i("ds_write_b128 %s, %s offset:%d" % (base, vr(T, 4), (k % 4) * 16384))
assert nz == 8
noff = (M_CNT - M_OFF) // 16
i(f"""
v_cmp_gt_u32 vcc, {remz//16}, v0
s_and_saveexec_b64 s[14:15], vcc
ds_write_b128 v8, {vr(T,4)}
s_mov_b64 exec, s[14:15]
v_cmp_gt_u32 vcc, {noff}, v0
s_and_saveexec_b64 s[14:15], vcc
ds_write_b128 v8, {vr(T+4,4)} offset:{M_OFF-131072}
s_mov_b64 exec, s[14:15]
v_cmp_gt_u32 vcc, 4, v0
s_and_saveexec_b64 s[14:15], vcc
ds_write_b128 v8, {vr(T,4)} offset:{M_CNT-131072}
s_mov_b64 exec, s[14:15]
""")
c("record indices. v4/v5 = start|cnt<<16 of chunks slot, slot+64")
i(f"""
v_lshrrev_b32 v2, 4, v0
v_and_b32 v9, 15, v0
v_cmp_gt_u32 vcc, {NCH-64}, v2
v_mul_u32_u24 v10, {CH}, v2
v_add_u32 v9, s6, v9
s_add_u32 s13, s6, s7
s_cmp_eq_u32 s6, 0
s_cbranch_scc0 K2_R_W0
s_waitcnt vmcnt({9 if "pref" in EXP else 8})
s_branch K2_R_W1
""")
e("K2_R_W0:")
i("s_waitcnt vmcnt(0)")
e("K2_R_W1:")
stamp(1)
i(f"""
v_cndmask_b32 v5, 0, v5, vcc
v_lshrrev_b32 v6, 16, v4
v_lshrrev_b32 v7, 16, v5
v_and_b32 v4, 0xffff, v4
v_and_b32 v5, 0xffff, v5
v_max_u32 v8, v6, v7
v_cmp_lt_u32 s[48:49], s13, v8
v_min_u32 v6, s13, v6
v_min_u32 v7, s13, v7
v_add3_u32 v4, v4, v10, v9
v_add3_u32 v5, v5, v10, v9
v_add_u32 v5, {64*CH}, v5
v_bfrev_b32 v8, 1
v_add_u32 v10, 16, v9
v_cmp_lt_u32 s[40:41], v9, v6
v_cmp_lt_u32 s[44:45], v9, v7
v_cmp_lt_u32 s[42:43], v10, v6
v_cmp_lt_u32 s[46:47], v10, v7
s_mov_b32 s50, {WS_RA}
s_mov_b32 s51, {WS_RB}
v_lshlrev_b32 v6, 4, v4
v_lshlrev_b32 v7, 4, v5
v_lshlrev_b32 v4, 2, v4
v_lshlrev_b32 v5, 2, v5
v_cndmask_b32 v9, v8, v6, s[40:41]
v_cndmask_b32 v10, v8, v4, s[40:41]
buffer_load_dwordx4 {vr(D0,4)}, v9, s[24:27], s50 offen
buffer_load_dword v{D1}, v10, s[24:27], s51 offen
v_cndmask_b32 v9, v8, v7, s[44:45]
v_cndmask_b32 v10, v8, v5, s[44:45]
buffer_load_dwordx4 {vr(D0+8,4)}, v9, s[24:27], s50 offen
buffer_load_dword v{D1+2}, v10, s[24:27], s51 offen
v_cndmask_b32 v9, v8, v6, s[42:43]
v_cndmask_b32 v10, v8, v4, s[42:43]
buffer_load_dwordx4 {vr(D0+4,4)}, v9, s[24:27], s50 offen offset:256
buffer_load_dword v{D1+1}, v10, s[24:27], s51 offen offset:64
v_cndmask_b32 v9, v8, v7, s[46:47]
v_cndmask_b32 v10, v8, v5, s[46:47]
buffer_load_dwordx4 {vr(D0+12,4)}, v9, s[24:27], s50 offen offset:256
buffer_load_dword v{D1+3}, v10, s[24:27], s51 offen offset:64
s_cmp_eq_u32 s6, 0
s_cbranch_scc0 K2_R_NOFIRST
s_cmp_eq_u32 s7, 32
s_cbranch_scc0 K2_R_NOFIRST
""")
c("first round only: h tile -> LDS, finish W fragments")
i(f"""
s_waitcnt vmcnt({9 if "pref" in EXP else 8})
v_cmp_gt_u32 vcc, 768, v0
v_add_u32 v11, {M_H}, v11
s_and_saveexec_b64 s[14:15], vcc
ds_write_b128 v11, {vr(LL,4)}
s_mov_b32 exec_lo, 0
s_mov_b32 exec_hi, -1
s_mov_b32 s12, 0x05040100
s_mov_b32 s13, 0x07060302
v_perm_b32 v{W0}, v{LL+5}, v{LL+4}, s12
v_perm_b32 v{W0+1}, v{LL+7}, v{LL+6}, s12
v_and_b32 v{W0+2}, 0xffff, v{LL+8}
v_mov_b32 v{W0+3}, 0
v_perm_b32 v{W1}, v{LL+5}, v{LL+4}, s13
v_perm_b32 v{W1+1}, v{LL+7}, v{LL+6}, s13
v_lshrrev_b32 v{W1+2}, 16, v{LL+8}
v_mov_b32 v{W1+3}, 0
s_mov_b64 exec, -1
""")
e("K2_R_NOFIRST:")
i(f"""
v_mov_b32 v11, 1
v_mov_b32 v10, {M_CNT}
s_waitcnt lgkmcnt(0)
""")
stamp(2)
i("s_barrier")
stamp(3)
i(f"""
s_mov_b64 exec, s[48:49]
ds_write_b32 v10, v11 offset:32
s_mov_b64 exec, -1
s_movk_i32 s12, {CAP}
s_mov_b32 s13, 0x3f800000
s_mov_b32 s52, 0xffff
v_mov_b32 v{T+4}, 0x3f80
v_mov_b32 v{T+5}, 1.0
s_waitcnt vmcnt(0)
""")
stamp(4)
for q in range(4):
    i(f"""
    s_mov_b64 exec, s[{40+2*q}:{41+2*q}]
    v_bfe_u32 v{LL+q}, v{D1+q}, 3, 3
    v_lshl_add_u32 v4, v{LL+q}, 2, v10
    ds_add_rtn_u32 v{LL+4+q}, v4, v11
    """)
for q in range(4):
    A = D0 + 4 * q
    i(f"""
    s_mov_b64 exec, s[{40+2*q}:{41+2*q}]
    s_waitcnt lgkmcnt({3-q if q else 3})
    """ if q == 0 else f"""
    s_mov_b64 exec, s[{40+2*q}:{41+2*q}]
    """)
    if q == 0:
        i("s_waitcnt lgkmcnt(0)")
    i(f"""
    v_cmp_gt_u32 vcc, s12, v{LL+4+q}
    v_mad_u32_u24 v4, v{LL+q}, s12, v{LL+4+q}
    v_and_b32 v5, 7, v{D1+q}
    s_and_b64 exec, exec, vcc
    v_lshlrev_b32 v6, 4, v4
    ds_write_b128 v6, {vr(A,4)} offset:{M_REC}
    v_lshl_add_u32 v6, v5, 1, v6
    ds_write_b16 v6, v{T+4} offset:{M_ONE}
    v_mul_u32_u24 v7, 40, v4
    v_lshl_add_u32 v7, v5, 3, v7
    v_add_u32 v7, {M_ST}, v7
    v_bfi_b32 v{A+3}, s52, v{A+3}, v{T+5}
    ds_write_b64 v7, {vr(A+2,2)}
    v_not_b32 v8, v{LL+4+q}
    v_and_b32 v8, 4, v8
    v_and_b32 v9, 0xffffff00, v{D1+q}
    v_lshl_or_b32 v9, v8, 5, v9
    v_lshlrev_b32 v4, 2, v4
    v_add_u32 v4, {M_OFF}, v4
    ds_write_b32 v4, v9
    """)
i(f"""
s_mov_b64 exec, -1
s_waitcnt lgkmcnt(0)
""")
stamp(5)
i("s_barrier")
stamp(6)
i(f"""
ds_read_b128 v[4:7], v10
ds_read_b128 {vr(LL,4)}, v10 offset:16
ds_read_b32 v8, v10 offset:32
v_lshl_add_u32 v9, s4, 2, v10
ds_read_b32 v9, v9
""")
c("lane addresses for the main loop")
i(f"""
v_and_b32 v{T}, 63, v0
v_lshrrev_b32 v{T+1}, 5, v{T}
v_and_b32 v{T+2}, 31, v{T}
s_mul_i32 s13, s4, {CAP}
s_lshl_b32 s14, s13, 2
s_add_u32 s14, s14, {M_OFF}
v_lshlrev_b32 v1, 4, v{T+1}
v_add_u32 v1, s14, v1
s_lshl_b32 s14, s13, 4
s_movk_i32 s15, {M_ONE}
v_mul_u32_u24 v2, s15, v{T+1}
v_lshl_add_u32 v2, v{T+2}, 4, v2
v_add_u32 v2, s14, v2
s_mul_i32 s14, s13, 40
s_add_u32 s14, s14, {M_ST}
v_bfe_u32 v3, v{T}, 2, 2
v_lshl_add_u32 v3, v{T+1}, 2, v3
v_mul_u32_u24 v3, 40, v3
v_bfe_u32 v{T+3}, v{T}, 4, 1
v_lshl_add_u32 v3, v{T+3}, 5, v3
v_and_b32 v{T+3}, 3, v{T}
v_lshl_add_u32 v3, v{T+3}, 3, v3
v_add_u32 v3, s14, v3
s_waitcnt lgkmcnt(0)
v_max3_u32 v4, v4, v5, v6
v_max3_u32 v4, v4, v7, v{LL}
v_max3_u32 v4, v4, v{LL+1}, v{LL+2}
v_max_u32 v4, v4, v{LL+3}
s_nop 0
v_readfirstlane_b32 s13, v4
v_readfirstlane_b32 s53, v8
v_readfirstlane_b32 s54, v9
s_cmp_gt_u32 s13, {CAP}
s_cbranch_scc1 K2_OVERFLOW
s_add_u32 s54, s54, 15
s_lshr_b32 s54, s54, 4
s_getreg_b32 s65, hwreg(HW_REG_HW_ID)
s_lshl_b32 s65, s65, 8
s_or_b32 s65, s65, s54
s_cmp_eq_u32 s54, 0
s_cbranch_scc1 K2_LOOP_DONE
""")
def issue_off_reads():
    for g in range(4):
        i("ds_read_b128 %s, v1 offset:%d" % (vr(O + 4 * g, 4), g * 32))
def issue_gathers():
    if "nogather" in EXP:
        return
    for r in range(16):
        if "samerow" in EXP:
            i("buffer_load_dword v%d, v%d, s[28:31], 0 offen" % (LL + r, 0))
        else:
            i("buffer_load_dword v%d, v%d, s[28:31], 0 offen" % (LL + r, O + r))
issue_off_reads()
i("s_waitcnt lgkmcnt(0)")
issue_gathers()
i("v_add_u32 v1, 128, v1")

def silu_batch(D, b, Pd, mf_exp=None, mf_rcp=None):
    base = D + 8 * b
    for k in range(8):
        i("v_exp_f32 v%d, v%d" % (T + k, base + k))
        if k == 1 and mf_exp:
            i(mf_exp)
    for k in range(0, 8, 2):
        i("v_pk_add_f32 %s, %s, 1.0 op_sel_hi:[1,0]" % (vr(T + k, 2), vr(T + k, 2)))
    for k in range(8):
        i("v_rcp_f32 v%d, v%d" % (T + k, T + k))
        if k == 1 and mf_rcp:
            i(mf_rcp)
    for k in range(0, 8, 2):
        i("v_pk_mul_f32 %s, %s, %s" % (vr(T + k, 2), vr(T + k, 2), vr(base + k, 2)))
    for k in range(4):
        i("v_cvt_pk_bf16_f32 v%d, v%d, v%d" % (Pd + k, T + 2 * k, T + 2 * k + 1))
def mf(d, a, b, cc):
    return "v_mfma_f32_32x32x16_bf16 %s, %s, %s, %s" % (vr(d, 16), vr(a, 4), vr(b, 4), vr(cc, 16))

def tile_head(full):
    i("ds_read_b128 %s, v2" % vr(X, 4))
    i("ds_read_b64_tr_b16 %s, v3" % vr(S0, 2))
    i("ds_read_b64_tr_b16 %s, v3 offset:320" % vr(S0 + 2, 2))
    if full:
        i("ds_read_b64_tr_b16 %s, v3 offset:640" % vr(S1, 2))
        i("ds_read_b64_tr_b16 %s, v3 offset:960" % vr(S1 + 2, 2))

e("K2_LOOP:")
if "prio" in EXP:
    i("""
    s_setprio 3
    s_cmp_ge_u32 s54, 9
    s_cbranch_scc1 K2_PR
    s_setprio 2
    s_cmp_ge_u32 s54, 6
    s_cbranch_scc1 K2_PR
    s_setprio 1
    s_cmp_ge_u32 s54, 3
    s_cbranch_scc1 K2_PR
    s_setprio 0
    """)
    e("K2_PR:")
i("""
s_cmp_eq_u32 s54, 1
s_cbranch_scc1 K2_HALF
""")
tile_head(True)
issue_off_reads()
i("s_waitcnt vmcnt(0) lgkmcnt(8)")
i(mf(D1, X, W1, LL))
for r in range(16):
    i("v_lshlrev_b32 v%d, 16, v%d" % (D0 + r, LL + r))
i("""
s_sub_u32 s54, s54, 2
v_add_u32 v2, 512, v2
v_add_u32 v3, 1280, v3
""")
i(mf(D0, X, W0, D0))
i("""
s_cmp_eq_u32 s54, 0
s_cbranch_scc1 K2_NOPF
s_waitcnt lgkmcnt(0)
""")
issue_gathers()
i("v_add_u32 v1, 128, v1")
e("K2_NOPF:")
i("s_waitcnt lgkmcnt(0)")
silu_batch(D1, 0, P)
silu_batch(D1, 1, P2, mf_exp=mf(G1, S0, P, G1))
silu_batch(D0, 0, P, mf_exp=mf(G1, S1, P2, G1))
silu_batch(D0, 1, P2, mf_exp=mf(G0, S0, P, G0))
i("""
s_cmp_eq_u32 s54, 0
s_nop 0
""")
i(mf(G0, S1, P2, G0))
i("""
s_cbranch_scc0 K2_LOOP
s_branch K2_LOOP_DONE
""")
e("K2_HALF:")
tile_head(False)
i("s_waitcnt vmcnt(0) lgkmcnt(2)")
i(mf(D1, X, W1, LL))
for r in range(16):
    i("v_lshlrev_b32 v%d, 16, v%d" % (D0 + r, LL + r))
i("s_nop 1")
i(mf(D0, X, W0, D0))
i("s_waitcnt lgkmcnt(0)")
silu_batch(D1, 0, P)
silu_batch(D0, 0, P2, mf_exp=mf(G1, S0, P, G1))
i("s_nop 1")
i(mf(G0, S0, P2, G0))
e("K2_LOOP_DONE:")
i("""
s_cmp_eq_u32 s53, 0
s_cbranch_scc1 K2_EPI
s_add_u32 s6, s6, s7
s_branch K2_NEXT
""")
e("K2_OVERFLOW:")
i("s_lshr_b32 s7, s7, 1")
e("K2_NEXT:")
i("""
v_lshrrev_b32 v3, 4, v0
v_lshlrev_b32 v3, 2, v3
buffer_load_dword v4, v3, s[24:27], s8 offen
buffer_load_dword v5, v3, s[24:27], s8 offen offset:256
s_waitcnt vmcnt(0) lgkmcnt(0)
s_barrier
s_branch K2_ROUND
""")

e("K2_EPI:")
stamp(7)
c("weights for the epilogue; waves 0-7: node GEMM column tile, waves 8-15: pos rows")
WF = 48
i(f"""
v_and_b32 v4, 63, v0
v_and_b32 v5, 15, v4
v_lshrrev_b32 v6, 4, v4
v_lshlrev_b32 v7, 4, v4
s_movk_i32 s12, 272
v_mul_u32_u24 v8, s12, v5
v_lshl_add_u32 v8, v6, 4, v8
s_cmp_ge_u32 s3, 8
s_cbranch_scc1 K2_EPI_P0
s_lshl_b32 s13, s3, 13
s_add_u32 s13, s13, {WS_WH}
s_add_u32 s14, s13, 4096
""")
for s in range(8):
    i("buffer_load_dwordx4 %s, v7, s[24:27], s%d offen offset:%d" % (vr(WF + 4 * s, 4), 13 if s < 4 else 14, (s & 3) * 1024))
AF = 80
ACH, ACM = 96, 108
i(f"v_add_u32 v9, {M_H}, v8")
for r in range(24):
    i("v_mov_b32 v%d, 0" % (ACH + r))
def mf16(d, a, b):
    return "v_mfma_f32_16x16x32_bf16 %s, %s, %s, %s" % (vr(d, 4), vr(a, 4), vr(b, 4), vr(d, 4))
for mt in range(3):
    for s in range(4):
        i("ds_read_b128 %s, v9 offset:%d" % (vr(AF + 4 * s, 4), mt * 16 * 272 + s * 64))
    if mt == 0:
        i("s_waitcnt vmcnt(4)")
    for s in range(4):
        i("s_waitcnt lgkmcnt(%d)" % (3 - s))
        i(mf16(ACH + 4 * mt, AF + 4 * s, WF + 4 * s))
i("s_branch K2_EPI_B")
e("K2_EPI_P0:")
i(f"""
s_mov_b32 s13, {WS_WX}
v_lshlrev_b32 v9, 4, v6
buffer_load_dwordx4 {vr(WF,4)}, v9, s[24:27], s13 offen
buffer_load_dwordx4 {vr(WF+4,4)}, v9, s[24:27], s13 offen offset:64
buffer_load_dwordx4 {vr(WF+8,4)}, v9, s[24:27], s13 offen offset:128
buffer_load_dwordx4 {vr(WF+12,4)}, v9, s[24:27], s13 offen offset:192
s_sub_u32 s14, s3, 8
s_lshl_b32 s14, s14, 4
v_and_b32 v10, 3, v5
v_lshl_add_u32 v10, v6, 2, v10
v_add_u32 v10, s14, v10
v_mul_u32_u24 v11, 171, v10
v_lshrrev_b32 v11, 9, v11
v_mul_u32_u24 v{AF}, 3, v11
v_sub_u32 v10, v10, v{AF}
v_lshlrev_b32 v11, 2, v11
v_add_u32 v11, {M_NOD}, v11
ds_read_b32 v11, v11
v_cmp_gt_u32 vcc, 4, v5
v_bfrev_b32 v{AF+1}, 1
s_mov_b32 s40, s18
s_mov_b32 s41, s19
s_mov_b32 s42, 60000
s_mov_b32 s43, 0x20000
v_mov_b32 v{ACH}, 0
v_mov_b32 v{ACH+1}, 0
v_mov_b32 v{ACH+2}, 0
v_mov_b32 v{ACH+3}, 0
s_waitcnt lgkmcnt(0)
v_cmp_le_i32 s[14:15], 0, v11
v_lshrrev_b32 v11, 8, v11
v_mul_u32_u24 v11, 6, v11
v_lshl_add_u32 v11, v10, 1, v11
s_and_b64 vcc, vcc, s[14:15]
s_nop 1
v_cndmask_b32 v11, v{AF+1}, v11, vcc
buffer_load_ushort v10, v11, s[40:43], 0 offen
""")
e("K2_EPI_B:")
c("all waves: publish G (bf16) after every wave has left the main loop")
i(f"""
v_lshrrev_b32 v{T+24}, 5, v4
v_and_b32 v{T+25}, 31, v4
s_mul_i32 s13, s4, 5
v_add_u32 v{T+24}, s13, v{T+24}
s_lshl_b32 s13, s5, 7
v_lshl_add_u32 v{T+25}, v{T+25}, 2, s13
v_mad_u32_u24 v{T+26}, v{T+24}, s12, v{T+25}
s_movk_i32 s13, 816
v_mad_u32_u24 v{T+27}, v{T+24}, s13, v{T+25}
""")
for r in range(12):
    i("v_cvt_pk_bf16_f32 v%d, v%d, v%d" % (G0 + r, G0 + r, G1 + r))
stamp(8)
i("s_barrier")
stamp(9)
for gq in range(3):
    if gq == 2:
        i("s_mov_b32 exec_hi, 0")
    for k in range(3):
        i("ds_write_b32 v%d, v%d offset:%d" % (T + 27, G0 + 4 * gq + k, M_MP + 2 * gq * 816 + k * 272))
    i("ds_write_b32 v%d, v%d offset:%d" % (T + 26, G0 + 4 * gq + 3, M_MH + 2 * gq * 272))
i(f"""
s_mov_b64 exec, -1
s_mov_b32 s44, {f32(NLN2)}
s_mov_b32 s45, {f32(NLOG2E)}
s_waitcnt lgkmcnt(0)
s_barrier
""")
stamp(10)
i("""
s_cmp_ge_u32 s3, 8
s_cbranch_scc1 K2_EPI_P1
""")
for mt in range(3):
    for s in range(4):
        i("ds_read_b128 %s, v8 offset:%d" % (vr(16 + 16 * (mt & 1) + 4 * s, 4), M_MH + mt * 16 * 272 + s * 64))
    if mt == 0:
        i("s_waitcnt vmcnt(0)")
    for s in range(4):
        i("s_waitcnt lgkmcnt(%d)" % (3 - s))
        i(mf16(ACM + 4 * mt, 16 + 16 * (mt & 1) + 4 * s, WF + 16 + 4 * s))
HV, NO = 48, 64
i(f"""
s_lshl_b32 s13, s3, 5
v_lshl_add_u32 v9, v5, 1, s13
v_lshlrev_b32 v10, 2, v6
v_mad_u32_u24 v10, v10, s12, v9
v_add_u32 v10, {M_H}, v10
v_lshlrev_b32 v11, 4, v6
v_add_u32 v11, {M_NOD}, v11
""")
for mt in range(3):
    i("ds_read_b128 %s, v11 offset:%d" % (vr(NO + 4 * mt, 4), mt * 64))
for mt in range(3):
    for k in range(4):
        i("ds_read_u16 v%d, v10 offset:%d" % (HV + 4 * mt + k, (16 * mt + k) * 272))
i("s_nop 4")
for r in range(12):
    i("v_fma_f32 v%d, v%d, s44, v%d" % (ACH + r, ACM + r, ACH + r))
for r in range(12):
    i("v_mul_f32 v%d, s45, v%d" % (ACM + r, ACH + r))
for r in range(12):
    i("v_exp_f32 v%d, v%d" % (ACM + r, ACM + r))
for r in range(12):
    i("v_add_f32 v%d, 1.0, v%d" % (ACM + r, ACM + r))
for r in range(12):
    i("v_rcp_f32 v%d, v%d" % (ACM + r, ACM + r))
i("s_waitcnt lgkmcnt(0)")
for r in range(12):
    i("v_lshlrev_b32 v%d, 16, v%d" % (HV + r, HV + r))
    i("v_add_u32 v%d, v%d, v9" % (NO + r, NO + r))
for r in range(12):
    i("v_fma_f32 v%d, v%d, v%d, v%d" % (ACH + r, ACH + r, ACM + r, HV + r))
    i("v_cvt_pk_bf16_f32 v%d, v%d, v%d" % (ACH + r, ACH + r, ACH + r))
    i("buffer_store_short v%d, v%d, s[36:39], 0 offen" % (ACH + r, NO + r))
if PROF:
    stamp(11)
    i("s_waitcnt vmcnt(0)")
prof_out(1, 22, 12)
i("s_endpgm")
e("K2_EPI_P1:")
i(f"""
s_sub_u32 s14, s3, 8
s_mul_i32 s14, s14, {16*272}
v_add_u32 v8, s14, v8
""")
for s in range(4):
    i("ds_read_b128 %s, v8 offset:%d" % (vr(16 + 4 * s, 4), M_MP + s * 64))
i("s_waitcnt vmcnt(0)")
for s in range(4):
    i("s_waitcnt lgkmcnt(%d)" % (3 - s))
    i(mf16(ACH, 16 + 4 * s, WF + 4 * s))
i(f"""
v_cmp_eq_u32 vcc, 1, v5
v_cmp_eq_u32 s[14:15], 2, v5
v_cmp_eq_u32 s[46:47], 3, v5
v_lshlrev_b32 v10, 16, v10
s_mov_b32 s13, 2560000
s_nop 4
v_cndmask_b32 v{ACH}, v{ACH}, v{ACH+1}, vcc
v_cndmask_b32 v{ACH}, v{ACH}, v{ACH+2}, s[14:15]
v_cndmask_b32 v{ACH}, v{ACH}, v{ACH+3}, s[46:47]
v_fma_f32 v{ACH}, v{ACH}, s44, v10
v_cvt_pk_bf16_f32 v{ACH}, v{ACH}, v{ACH}
buffer_store_short v{ACH}, v11, s[36:39], s13 offen
""")
if PROF:
    stamp(11)
    i("s_waitcnt vmcnt(0)")
prof_out(1, 22, 12)
e("K2_END:")
i("s_endpgm")

e('.section .rodata,"a"')
for name, nv, ns in ((K1, 160, 100), (K2, 128, 100)):
    e(".p2align 6")
    e(".amdhsa_kernel %s" % name)
    e("  .amdhsa_next_free_vgpr %d" % nv)
    e("  .amdhsa_next_free_sgpr %d" % ns)
    e("  .amdhsa_accum_offset %d" % nv)
    e("  .amdhsa_group_segment_fixed_size 0")
    e("  .amdhsa_kernarg_size 88")
    e("  .amdhsa_user_sgpr_count 2")
    e("  .amdhsa_user_sgpr_kernarg_segment_ptr 1")
    e("  .amdhsa_system_sgpr_workgroup_id_x 1")
    e(".end_amdhsa_kernel")

open(OUT, "w").write("\n".join(L) + "\n")
print("wrote", OUT, "K2_LDS", K2_LDS, "M_OFF", M_OFF, "M_CNT", M_CNT, "M_NOD", M_NOD, "M_H", M_H)
```
